```python
import torch

def _softmax(x, axis=-1):
    return torch.softmax(x, dim=axis)
def _gelu(x):
    return torch.nn.functional.gelu(x, approximate="tanh")
def _silu(x):
    return torch.nn.functional.silu(x)
def _sigmoid(x):
    return torch.sigmoid(x)
def _layernorm(x, axis=-1, eps=1e-5):
    m = x.mean(dim=axis, keepdim=True)
    v = x.var(dim=axis, keepdim=True, unbiased=False)
    return (x - m) / torch.sqrt(v + eps)
def _scatter_add(tgt, idx, src, axis=0):
    return tgt.clone().index_add_(axis, idx, src)
def _segment_sum(src, seg, n):
    out = torch.zeros((n,) + src.shape[1:], dtype=src.dtype)
    return out.index_add_(0, seg, src)
def _pad(x, pw):
    flat = tuple(v for pair in reversed(pw) for v in pair)
    return torch.nn.functional.pad(x, flat)

kernel_name = 'parallel_sum__mha_block_cached__dense_activation_relu__decode'

def setup_inputs():

    _w = (lambda a: (lambda t: t.to(torch.bfloat16) if t.is_floating_point() else t)(torch.as_tensor(a)))
    def _A_setup():
        B, Sq, D = 8, 1, 1024
        H, Sk, Dh = 32, 4096, 128
        return {
            "x": _w((lambda *s: torch.randn(*s, dtype=torch.bfloat16) * 0.05)(B, Sq, D)),
            "k_cache": _w((lambda *s: torch.randn(*s, dtype=torch.bfloat16) * 3.2)(B, H, Sk, Dh)),
            "v_cache": _w((lambda *s: torch.randn(*s, dtype=torch.bfloat16) * 1.6)(B, H, Sk, Dh)),
            "wq": _w((lambda *s: torch.randn(*s, dtype=torch.bfloat16) * 3.2)(D, H * Dh) * (D ** -0.5)),
            "wo": _w((lambda *s: torch.randn(*s, dtype=torch.bfloat16) * 1.6)(H * Dh, D) * ((H * Dh) ** -0.5)),
        }
    _A_in = _A_setup()

    def _B_setup():
        B, S, D, Dff = 8, 1, 1024, 3584
        return {
            "x": _w((lambda *s: torch.randn(*s, dtype=torch.bfloat16) * 0.05)(B, S, D)),
            "w1": _w((lambda *s: torch.randn(*s, dtype=torch.bfloat16) * 0.05)(D, Dff)),
            "w2": _w((lambda *s: torch.randn(*s, dtype=torch.bfloat16) * 0.05)(Dff, D)),
        }
    _B_in = _B_setup()

    return {
        "A_x": _A_in["x"],
        "A_k_cache": _A_in["k_cache"],
        "A_v_cache": _A_in["v_cache"],
        "A_wq": _A_in["wq"],
        "A_wo": _A_in["wo"],
        "B_x": _B_in["x"],
        "B_w1": _B_in["w1"],
        "B_w2": _B_in["w2"],
    }

def reference(A_x, A_k_cache, A_v_cache, A_wq, A_wo, B_x, B_w1, B_w2):
    def _A_ref(x, k_cache, v_cache, wq, wo):
        B, Sq, D = x.shape
        H, Dh = 32, 128
        q = (lambda x, *d: x.permute(*d))((x @ wq).reshape(B, Sq, H, Dh), 0, 2, 1, 3)
        scores = torch.einsum("bhqd,bhkd->bhqk", q, k_cache) * (Dh ** -0.5)
        p = _softmax(scores, axis=-1)
        o = torch.einsum("bhqk,bhkd->bhqd", p, v_cache)
        return (lambda x, *d: x.permute(*d))(o, 0, 2, 1, 3).reshape(B, Sq, H * Dh) @ wo

    def _B_ref(x, w1, w2):
        h = torch.einsum("bsd,df->bsf", x, w1)
        zero = torch.zeros_like(h)
        h = torch.maximum(h, zero)
        return torch.einsum("bsf,fd->bsd", h, w2)

    x = A_x
    xn = _layernorm(x, axis=-1)
    return x + _A_ref(xn, A_k_cache, A_v_cache, A_wq, A_wo) + _B_ref(xn, B_w1, B_w2)
```

```python
import sys

KNAME = 'parallel_sum__mha_block_cached__dense_activation_relu__decode_kernel'

HEADER_COMMENTS = """; Kernarg layout for this problem (88 bytes, ptrs only, base s[0:1]):
"""

WS_EPOCH = 0
WS_X1Q = 0x100000
WS_X1H = 0x300000
WS_X2O = 0x500000
WS_X2H = 0x520000
WS_X3 = 0x600000
WS_TS = 0x800000
WS_SIZE = 0x900000

T_WQ, T_W1, T_WO, T_W2 = 0, 32768, 65536, 98304
XN = 131072
XN_RS = 272
QV = XN + 8 * XN_RS
OBUF = QV + 256
MLB = OBUF + 4096
A2 = MLB + 64
A2_RS = 528
LDS_TOTAL = A2 + 8 * A2_RS
LDS_ALLOC = 143360

SPIN_MAX = 400000


class Gen:
    def __init__(self, ts=False, kvflags='nt', wflags='nt'):
        self.L = []
        self.ts = ts
        self.kvflags = kvflags
        self.wflags = wflags

    def A(self, s):
        self.L.append(s)

    def I(self, s):
        for line in s.strip('\n').split('\n'):
            line = line.strip()
            if line:
                if line.endswith(':'):
                    self.L.append(line)
                else:
                    self.L.append('  ' + line)

    def stamp(self, idx, alllanes=False):
        if not self.ts:
            return
        self.I(f"""
        s_memrealtime s[76:77]
        s_waitcnt lgkmcnt(0)
        v_mov_b32 v166, s76
        v_mov_b32 v167, s78
        buffer_store_dword v166, v167, s[16:19], 0 offen offset:{idx*4}
        """)

    def gen(self):
        A, I = self.A, self.I
        A(HEADER_COMMENTS.rstrip('\n'))
        A(f"; @launch grid=(256,1,1) block=(576,1,1) lds={LDS_ALLOC}")
        A('.amdgcn_target "amdgcn-amd-amdhsa--gfx950"')
        A(".text")
        A(f".globl {KNAME}")
        A(".p2align 8")
        A(f".type {KNAME},@function")
        A(f"{KNAME}:")
        I("""
        s_cmp_ge_u32 s2, 256
        s_cbranch_scc1 L_end
        s_load_dwordx16 s[32:47], s[0:1], 0
        s_load_dwordx2 s[48:49], s[0:1], 64
        s_load_dwordx2 s[50:51], s[0:1], 80
        v_lshrrev_b32 v4, 6, v0
        v_and_b32 v1, 63, v0
        v_readfirstlane_b32 s3, v4
        v_lshrrev_b32 v2, 4, v1
        v_and_b32 v3, 15, v1
        s_lshr_b32 s4, s2, 5
        s_and_b32 s5, s2, 31
        s_mov_b32 s72, 0x3fb8aa3b
        s_waitcnt lgkmcnt(0)
        s_mov_b32 s16, s50
        s_and_b32 s17, s51, 0xffff
        """)
        I(f"""
        s_mov_b32 s18, {WS_SIZE}
        s_mov_b32 s19, 0x20000
        buffer_load_dword v5, off, s[16:19], 0 sc1
        """)
        if self.ts:
            I(f"""
            s_lshl_b32 s78, s2, 4
            s_add_u32 s78, s78, s3
            s_lshl_b32 s78, s78, 6
            s_add_u32 s78, s78, {WS_TS}
            """)
        I("""
        s_cmp_eq_u32 s3, 8
        s_cbranch_scc1 L_poller
        """)
        self.stamp(0)
        I("""
        s_mov_b32 s24, s32
        s_and_b32 s25, s33, 0xffff
        s_mov_b32 s26, 16384
        s_mov_b32 s27, 0x20000
        s_lshl_b32 s7, s3, 11
        v_lshlrev_b32 v6, 4, v1
        v_add_u32 v6, s7, v6
        s_lshl_b32 s64, s4, 8
        s_add_u32 s64, s64, s7
        v_lshlrev_b32 v7, 4, v3
        v_add_u32 v7, s64, v7
        buffer_load_dwordx4 v[108:111], v6, s[24:27], 0 offen
        buffer_load_dwordx4 v[112:115], v6, s[24:27], 0 offen offset:1024
        buffer_load_dwordx4 v[116:119], v7, s[24:27], 0 offen
        """)
        I(f"""
        s_lshl_b32 s64, s4, 20
        s_lshl_b32 s65, s5, 8
        s_add_u32 s64, s64, s65
        s_add_u32 s20, s38, s64
        s_addc_u32 s21, s39, 0
        s_and_b32 s21, s21, 0xffff
        s_mov_b32 s22, {127*8192+256}
        s_mov_b32 s23, 0x20000
        s_min_u32 s66, s5, 27
        s_mul_i32 s64, s4, {128*7168}
        s_lshl_b32 s65, s66, 8
        s_add_u32 s64, s64, s65
        s_add_u32 s52, s44, s64
        s_addc_u32 s53, s45, 0
        s_and_b32 s53, s53, 0xffff
        s_cmp_lt_u32 s5, 28
        s_cselect_b32 s54, {127*7168+256}, 0
        s_mov_b32 s55, 0x20000
        s_lshl_b32 s64, s5, 18
        s_lshl_b32 s65, s4, 8
        s_add_u32 s64, s64, s65
        s_add_u32 s56, s40, s64
        s_addc_u32 s57, s41, 0
        s_and_b32 s57, s57, 0xffff
        s_mov_b32 s58, {127*2048+256}
        s_mov_b32 s59, 0x20000
        s_lshl_b32 s64, s66, 18
        s_add_u32 s64, s64, s65
        s_add_u32 s60, s46, s64
        s_addc_u32 s61, s47, 0
        s_and_b32 s61, s61, 0xffff
        s_cmp_lt_u32 s5, 28
        s_cselect_b32 s62, {127*2048+256}, 0
        s_mov_b32 s63, 0x20000
        """)
        I("""
        v_lshlrev_b32 v8, 1, v2
        v_xor_b32 v8, v3, v8
        v_lshlrev_b32 v8, 4, v8
        v_xor_b32 v9, 128, v8
        """)
        tiles = [(20, 8192, T_WQ), (52, 7168, T_W1), (56, 2048, T_WO), (60, 2048, T_W2)]
        for (srd, stride, ldsb) in tiles:
            I(f"""
            v_mul_u32_u24 v10, {stride}, v2
            v_add_u32 v11, v10, v9
            v_add_u32 v10, v10, v8
            s_mul_i32 s64, s3, {16*stride}
            s_lshl_b32 s65, s3, 12
            s_add_u32 s65, s65, {ldsb}
            """)
            for i in range(4):
                I(f"""
                s_mov_b32 m0, s65
                s_add_u32 s65, s65, 1024
                buffer_load_dwordx4 v{10 + (i >> 1)}, s[{srd}:{srd+3}], s64 offen {self.wflags} lds
                s_add_u32 s64, s64, {4*stride}
                """)
        I(f"""
        s_lshl_b32 s64, s2, 20
        s_lshr_b32 s65, s2, 12
        s_add_u32 s8, s34, s64
        s_addc_u32 s9, s35, s65
        s_and_b32 s9, s9, 0xffff
        s_mov_b32 s10, 0x100000
        s_mov_b32 s11, 0x20000
        s_add_u32 s12, s36, s64
        s_addc_u32 s13, s37, s65
        s_and_b32 s13, s13, 0xffff
        s_mov_b32 s14, 0x100000
        s_mov_b32 s15, 0x20000
        s_lshl_b32 s7, s3, 12
        v_lshlrev_b32 v19, 4, v1
        v_add_u32 v19, s7, v19
        """)
        KA, VA, KB, VB = 44, 60, 76, 92

        def issue(srd, base):
            for i in range(4):
                I(f"buffer_load_dwordx4 v[{base+4*i}:{base+4*i+3}], v19, s[{srd}:{srd+3}], 0 offen offset:{1024*i} {self.kvflags}")
        issue(8, KA)
        issue(12, VA)
        I("v_add_u32 v19, 0x8000, v19")
        issue(8, KB)
        issue(12, VB)
        I("v_add_u32 v19, 0x8000, v19")
        I("s_waitcnt vmcnt(32)")
        self.stamp(1)
        I("""
        v_readfirstlane_b32 s6, v5
        """)
        for k in range(8):
            I(f"""
            v_lshlrev_b32 v{120+2*k}, 16, v{108+k}
            v_and_b32 v{121+2*k}, 0xffff0000, v{108+k}
            """)
        I("s_add_u32 s6, s6, 1")
        I("""
        v_add_f32 v136, v120, v121
        v_add_f32 v137, v122, v123
        v_add_f32 v138, v124, v125
        v_add_f32 v139, v126, v127
        v_add_f32 v140, v128, v129
        v_add_f32 v141, v130, v131
        v_add_f32 v142, v132, v133
        v_add_f32 v143, v134, v135
        v_add_f32 v136, v136, v137
        v_add_f32 v138, v138, v139
        v_add_f32 v140, v140, v141
        v_add_f32 v142, v142, v143
        v_add_f32 v136, v136, v138
        v_add_f32 v140, v140, v142
        v_add_f32 v136, v136, v140
        """)

        def wave_allreduce(v, t, op='v_add_f32'):
            I(f"""
            s_nop 1
            {op}_dpp v{v}, v{v}, v{v} row_ror:8 row_mask:0xf bank_mask:0xf
            s_nop 1
            {op}_dpp v{v}, v{v}, v{v} row_ror:4 row_mask:0xf bank_mask:0xf
            s_nop 1
            {op}_dpp v{v}, v{v}, v{v} row_ror:2 row_mask:0xf bank_mask:0xf
            s_nop 1
            {op}_dpp v{v}, v{v}, v{v} row_ror:1 row_mask:0xf bank_mask:0xf
            """)
            row_allreduce(v, t, op)

        def row_allreduce(v, t, op='v_add_f32'):
            I(f"""
            v_mov_b32 v{t}, v{v}
            s_nop 1
            v_permlane16_swap_b32 v{v}, v{t}
            {op} v{v}, v{v}, v{t}
            v_mov_b32 v{t}, v{v}
            s_nop 1
            v_permlane32_swap_b32 v{v}, v{t}
            {op} v{v}, v{v}, v{t}
            """)
        wave_allreduce(136, 137)
        I("v_mul_f32 v136, 0x3a800000, v136")
        for k in range(16):
            I(f"v_sub_f32 v{120+k}, v{120+k}, v136")
        I("v_mul_f32 v138, v120, v120")
        I("v_mul_f32 v139, v121, v121")
        for k in range(2, 16, 2):
            I(f"v_fmac_f32 v138, v{120+k}, v{120+k}")
            I(f"v_fmac_f32 v139, v{121+k}, v{121+k}")
        I("v_add_f32 v138, v138, v139")
        wave_allreduce(138, 139)
        I("""
        v_mul_f32 v138, 0x3a800000, v138
        v_cvt_pk_bf16_f32 v140, v136, v138
        v_lshlrev_b32 v136, 16, v140
        v_and_b32 v138, 0xffff0000, v140
        v_add_f32 v138, 0x3727c5ac, v138
        v_cvt_pk_bf16_f32 v138, v138, v138
        v_and_b32 v138, 0xffff0000, v138
        v_sqrt_f32 v138, v138
        s_nop 0
        v_cvt_pk_bf16_f32 v138, v138, v138
        v_and_b32 v138, 0xffff0000, v138
        v_rcp_f32 v138, v138
        """)
        for k in range(4):
            I(f"""
            v_lshlrev_b32 v{120+2*k}, 16, v{116+k}
            v_and_b32 v{121+2*k}, 0xffff0000, v{116+k}
            """)
        for k in range(8):
            I(f"v_sub_f32 v{120+k}, v{120+k}, v136")
        for k in range(4):
            I(f"v_cvt_pk_bf16_f32 v{128+k}, v{120+2*k}, v{121+2*k}")
        for k in range(4):
            I(f"""
            v_lshlrev_b32 v{120+2*k}, 16, v{128+k}
            v_and_b32 v{121+2*k}, 0xffff0000, v{128+k}
            """)
        for k in range(8):
            I(f"v_mul_f32 v{120+k}, v{120+k}, v138")
        for k in range(4):
            I(f"v_cvt_pk_bf16_f32 v{128+k}, v{120+2*k}, v{121+2*k}")
        I(f"""
        s_mul_i32 s7, s3, {XN_RS}
        s_add_u32 s7, s7, {XN}
        v_lshlrev_b32 v132, 4, v3
        v_add_u32 v132, s7, v132
        ds_write_b128 v132, v[128:131]
        """)
        I("""
        v_lshrrev_b32 v133, 2, v3
        v_and_b32 v134, 3, v3
        v_lshlrev_b32 v135, 3, v2
        v_add_u32 v135, v135, v133
        v_lshlrev_b32 v135, 8, v135
        v_lshrrev_b32 v136, 1, v134
        s_lshl_b32 s7, s3, 1
        v_add_u32 v136, s7, v136
        v_lshlrev_b32 v137, 1, v133
        v_and_b32 v138, 1, v2
        v_lshlrev_b32 v138, 3, v138
        v_add_u32 v137, v137, v138
        v_xor_b32 v136, v136, v137
        v_lshlrev_b32 v136, 4, v136
        v_add_u32 v135, v135, v136
        v_and_b32 v134, 1, v134
        v_lshlrev_b32 v134, 3, v134
        v_add_u32 v18, v135, v134
        """)
        I("v_mov_b32 v164, v18")
        I(f"""
        v_and_b32 v133, 7, v3
        v_mul_u32_u24 v133, {XN_RS}, v133
        v_lshlrev_b32 v134, 4, v2
        v_add_u32 v133, v133, v134
        v_add_u32 v133, {XN}, v133
        """)
        I("s_waitcnt vmcnt(24) lgkmcnt(0)")
        self.stamp(2)
        I("s_barrier")
        for s in range(4):
            I(f"ds_read_b128 v[{136+4*s}:{139+4*s}], v133 offset:{64*s}")
        for s in range(4):
            for u in range(2):
                I(f"ds_read_b64_tr_b16 v[{108+4*s+2*u}:{109+4*s+2*u}], v164 offset:{T_WQ + s*8192 + u*1024}")
        for s in range(4):
            for u in range(2):
                I(f"ds_read_b64_tr_b16 v[{20+4*s+2*u}:{21+4*s+2*u}], v164 offset:{T_W1 + s*8192 + u*1024}")
        I("""
        v_mov_b32 v152, 0
        v_mov_b32 v153, 0
        v_mov_b32 v154, 0
        v_mov_b32 v155, 0
        v_mov_b32 v156, 0
        v_mov_b32 v157, 0
        v_mov_b32 v158, 0
        v_mov_b32 v159, 0
        s_waitcnt lgkmcnt(8)
        """)
        for s in range(4):
            I(f"v_mfma_f32_16x16x32_bf16 v[152:155], v[{136+4*s}:{139+4*s}], v[{108+4*s}:{111+4*s}], v[152:155]")
        I("s_waitcnt lgkmcnt(0)")
        for s in range(4):
            I(f"v_mfma_f32_16x16x32_bf16 v[156:159], v[{136+4*s}:{139+4*s}], v[{20+4*s}:{23+4*s}], v[156:159]")
        I(f"""
        v_and_b32 v124, 1, v2
        v_lshlrev_b32 v124, 2, v124
        v_lshrrev_b32 v125, 1, v2
        v_lshlrev_b32 v125, 1, v125
        v_add_u32 v124, v124, v125
        v_lshlrev_b32 v124, 13, v124
        s_lshl_b32 s64, s5, 16
        s_lshl_b32 s65, s4, 10
        s_add_u32 s64, s64, s65
        s_lshl_b32 s65, s3, 7
        s_add_u32 s64, s64, s65
        s_add_u32 s64, s64, {WS_X1Q}
        v_lshlrev_b32 v125, 3, v3
        v_add_u32 v124, v124, v125
        v_add_u32 v124, s64, v124
        v_add_u32 v125, 0x2000, v124
        v_add_u32 v126, {WS_X1H - WS_X1Q}, v124
        v_add_u32 v127, {WS_X1H - WS_X1Q}, v125
        v_cmp_lt_u32 vcc, 31, v1
        v_mov_b32 v129, s6
        v_mov_b32 v131, s6
        v_mov_b32 v161, s6
        v_mov_b32 v163, s6
        s_nop 1
        v_cndmask_b32 v128, v152, v154, vcc
        v_cndmask_b32 v130, v153, v155, vcc
        v_cndmask_b32 v160, v156, v158, vcc
        v_cndmask_b32 v162, v157, v159, vcc
        buffer_store_dwordx2 v[128:129], v124, s[16:19], 0 offen sc1
        buffer_store_dwordx2 v[130:131], v125, s[16:19], 0 offen sc1
        buffer_store_dwordx2 v[160:161], v126, s[16:19], 0 offen sc1
        buffer_store_dwordx2 v[162:163], v127, s[16:19], 0 offen sc1
        """)
        I("""
        v_and_b32 v20, 1, v3
        v_cmp_eq_u32 vcc, 1, v20
        v_mov_b32 v21, 0xffff
        v_mov_b32 v22, 0xffff0000
        v_lshrrev_b32 v23, 1, v3
        v_cndmask_b32 v21, v21, v22, vcc
        """)
        for j in range(4):
            I(f"""
            v_cmp_eq_u32 vcc, {j}, v23
            s_nop 1
            v_cndmask_b32 v{8+j}, 0, v21, vcc
            """)
        I("""
        v_mov_b32 v12, 0
        v_mov_b32 v13, 0
        v_mov_b32 v14, 0
        v_mov_b32 v15, 0
        v_mov_b32 v16, 0xff800000
        v_mov_b32 v17, 0xff800000
        v_mov_b32 v18, 0
        """)
        I(f"""
        v_lshlrev_b32 v20, 4, v3
        v_add_u32 v20, {QV}, v20
        """)
        self.stamp(3)
        I("s_barrier")
        I("""
        ds_read_b128 v[4:7], v20
        s_mov_b32 s70, 16
        s_waitcnt lgkmcnt(0)
        """)
        self.stamp(4)
        A("L_loop:")
        for (name, Kb, Vb) in (('A', KA, VA), ('B', KB, VB)):
            I("s_waitcnt vmcnt(12)")
            for d in range(4):
                for i in range(4):
                    c = '0' if d == 0 else f"v{20+i}"
                    I(f"v_dot2_f32_bf16 v{20+i}, v{Kb+4*i+d}, v{4+d}, {c}")
            issue(8, Kb)
            for ror in (8, 4, 2, 1):
                for i in range(4):
                    I(f"v_add_f32_dpp v{20+i}, v{20+i}, v{20+i} row_ror:{ror} row_mask:0xf bank_mask:0xf")
            I("""
            v_cvt_pk_bf16_f32 v24, v20, v21
            v_cvt_pk_bf16_f32 v25, v22, v23
            v_lshlrev_b32 v20, 16, v24
            v_and_b32 v21, 0xffff0000, v24
            v_lshlrev_b32 v22, 16, v25
            v_and_b32 v23, 0xffff0000, v25
            v_mul_f32 v20, 0x3db504f3, v20
            v_mul_f32 v21, 0x3db504f3, v21
            v_mul_f32 v22, 0x3db504f3, v22
            v_mul_f32 v23, 0x3db504f3, v23
            v_cvt_pk_bf16_f32 v24, v20, v21
            v_cvt_pk_bf16_f32 v25, v22, v23
            v_lshlrev_b32 v20, 16, v24
            v_and_b32 v21, 0xffff0000, v24
            v_lshlrev_b32 v22, 16, v25
            v_and_b32 v23, 0xffff0000, v25
            v_max3_f32 v24, v20, v21, v22
            v_max_f32 v24, v24, v23
            v_cmp_gt_f32 vcc, v24, v16
            """)
            I(f"s_cbranch_vccnz L_rare_{name}")
            A(f"L_resume_{name}:")
            for i in range(4):
                I(f"v_fma_f32 v{20+i}, v{20+i}, s72, -v17")
            for i in range(4):
                I(f"v_exp_f32 v{20+i}, v{20+i}")
            for i in range(4):
                I(f"v_cvt_pk_bf16_f32 v{24+i}, v{20+i}, v{20+i}")
            I("""
            v_add_f32 v20, v20, v21
            v_add_f32 v22, v22, v23
            v_add_f32 v18, v18, v20
            v_add_f32 v18, v18, v22
            """)
            for i in range(4):
                for j in range(4):
                    I(f"v_and_b32 v{28+4*i+j}, v{24+i}, v{8+j}")
            I("s_waitcnt vmcnt(12)")
            for i in range(4):
                I(f"v_mfma_f32_16x16x32_bf16 v[12:15], v[{28+4*i}:{31+4*i}], v[{Vb+4*i}:{Vb+4*i+3}], v[12:15]")
            issue(12, Vb)
            I("v_add_u32 v19, 0x8000, v19")
        I("""
        s_sub_u32 s70, s70, 1
        s_cmp_lg_u32 s70, 0
        s_cbranch_scc1 L_loop
        """)
        I("s_branch L_tail")
        for name in ('A', 'B'):
            A(f"L_rare_{name}:")
            row_allreduce(24, 25, 'v_max_f32')
            I(f"""
            v_max_f32 v16, v16, v24
            v_mul_f32 v25, s72, v16
            v_sub_f32 v26, v17, v25
            v_exp_f32 v26, v26
            v_mov_b32 v17, v25
            v_mul_f32 v12, v12, v26
            v_mul_f32 v13, v13, v26
            v_mul_f32 v14, v14, v26
            v_mul_f32 v15, v15, v26
            v_mul_f32 v18, v18, v26
            s_branch L_resume_{name}
            """)
        A("L_tail:")
        self.stamp(5)
        I("s_waitcnt vmcnt(0)")
        row_allreduce(18, 25)
        I("v_add_u32 v20, 0x10000, v164")
        for s in range(4):
            for u in range(2):
                I(f"ds_read_b64_tr_b16 v[{44+4*s+2*u}:{45+4*s+2*u}], v20 offset:{T_WO - 65536 + s*8192 + u*1024}")
        for s in range(4):
            for u in range(2):
                I(f"ds_read_b64_tr_b16 v[{60+4*s+2*u}:{61+4*s+2*u}], v20 offset:{T_W2 - 65536 + s*8192 + u*1024}")
        I(f"""
        v_mov_b32 v16, v17
        v_mov_b32 v17, v18
        s_lshl_b32 s7, s3, 3
        s_add_u32 s7, s7, {MLB}
        v_mov_b32 v21, s7
        ds_write_b64 v21, v[16:17]
        s_lshl_b32 s7, s3, 9
        s_add_u32 s7, s7, {OBUF}
        v_lshlrev_b32 v22, 5, v3
        v_lshlrev_b32 v23, 4, v2
        v_add_u32 v22, v22, v23
        v_add_u32 v22, s7, v22
        s_mov_b32 exec_hi, 0
        ds_write_b128 v22, v[12:15]
        s_mov_b64 exec, -1
        s_waitcnt lgkmcnt(0)
        s_barrier
        """)
        self.stamp(6)
        I(f"""
        s_lshl_b32 s64, s5, 3
        s_add_u32 s65, s64, s3
        s_lshl_b32 s65, s65, 9
        s_add_u32 s65, s65, {WS_X2O}
        v_lshlrev_b32 v24, 3, v1
        v_add_u32 v25, s65, v24
        s_cmp_lg_u32 s3, 0
        s_cbranch_scc1 L_x2poll
        """)
        I(f"""
        v_mov_b32 v21, {MLB}
        ds_read_b128 v[76:79], v21
        ds_read_b128 v[80:83], v21 offset:16
        ds_read_b128 v[84:87], v21 offset:32
        ds_read_b128 v[88:91], v21 offset:48
        v_lshlrev_b32 v22, 3, v1
        v_add_u32 v22, {OBUF}, v22
        """)
        for w in range(8):
            I(f"ds_read_b64 v[{92+2*w}:{93+2*w}], v22 offset:{512*w}")
        I("s_waitcnt lgkmcnt(8)")
        I("""
        v_max3_f32 v20, v76, v78, v80
        v_max3_f32 v20, v20, v82, v84
        v_max3_f32 v20, v20, v86, v88
        v_max_f32 v20, v20, v90
        """)
        for w in range(8):
            I(f"v_sub_f32 v{76+2*w}, v{76+2*w}, v20")
        for w in range(8):
            I(f"v_exp_f32 v{76+2*w}, v{76+2*w}")
        I("s_nop 0")
        I("v_mul_f32 v21, v76, v77")
        for w in range(1, 8):
            I(f"v_fmac_f32 v21, v{76+2*w}, v{77+2*w}")
        I("v_rcp_f32 v21, v21")
        I("s_waitcnt lgkmcnt(0)")
        I("v_mul_f32 v22, v76, v92")
        I("v_mul_f32 v23, v76, v93")
        for w in range(1, 8):
            I(f"v_fmac_f32 v22, v{76+2*w}, v{92+2*w}")
            I(f"v_fmac_f32 v23, v{76+2*w}, v{93+2*w}")
        I(f"""
        v_mul_f32 v22, v22, v21
        v_mul_f32 v23, v23, v21
        v_cvt_pk_bf16_f32 v22, v22, v23
        v_mov_b32 v23, s6
        s_add_u32 s65, s64, s4
        s_lshl_b32 s65, s65, 9
        s_add_u32 s65, s65, {WS_X2O}
        v_add_u32 v26, s65, v24
        buffer_store_dwordx2 v[22:23], v26, s[16:19], 0 offen sc1
        """)
        self.stamp(7)
        A("L_x2poll:")
        I(f"""
        v_add_u32 v26, {WS_X2H - WS_X2O}, v25
        s_mov_b32 s71, 0
        """)
        A("L_x2loop:")
        I(f"""
        buffer_load_dwordx2 v[76:77], v25, s[16:19], 0 offen sc1
        buffer_load_dwordx2 v[78:79], v26, s[16:19], 0 offen sc1
        s_waitcnt vmcnt(0)
        v_xor_b32 v80, s6, v77
        v_xor_b32 v81, s6, v79
        v_or_b32 v80, v80, v81
        v_cmp_ne_u32 vcc, 0, v80
        s_add_u32 s71, s71, 1
        s_cbranch_vccz L_x2done
        s_cmp_lt_u32 s71, {SPIN_MAX}
        s_cbranch_scc1 L_x2loop
        """)
        A("L_x2done:")
        I(f"""
        s_mul_i32 s7, s3, {A2_RS}
        s_add_u32 s7, s7, {A2}
        v_lshlrev_b32 v22, 2, v1
        v_add_u32 v22, s7, v22
        ds_write_b32 v22, v76
        ds_write_b32 v22, v78 offset:256
        v_and_b32 v23, 7, v3
        v_mul_u32_u24 v23, {A2_RS}, v23
        v_lshlrev_b32 v24, 4, v2
        v_add_u32 v23, v23, v24
        v_add_u32 v23, {A2}, v23
        s_waitcnt lgkmcnt(0)
        s_barrier
        """)
        self.stamp(8)
        I("""
        v_mov_b32 v12, 0
        v_mov_b32 v13, 0
        v_mov_b32 v14, 0
        v_mov_b32 v15, 0
        """)
        for s in range(8):
            I(f"ds_read_b128 v[{76+4*s}:{79+4*s}], v23 offset:{64*s}")
        for s in range(8):
            I(f"s_waitcnt lgkmcnt({7-s})")
            I(f"v_mfma_f32_16x16x32_bf16 v[12:15], v[{76+4*s}:{79+4*s}], v[{44+4*s}:{47+4*s}], v[12:15]")
        I(f"""
        v_and_b32 v20, 1, v2
        v_lshlrev_b32 v20, 1, v20
        v_lshrrev_b32 v21, 1, v2
        v_add_u32 v20, v20, v21
        v_lshlrev_b32 v20, 13, v20
        s_lshl_b32 s64, s4, 5
        s_lshl_b32 s65, s3, 2
        s_add_u32 s64, s64, s65
        s_lshl_b32 s64, s64, 13
        s_lshl_b32 s65, s5, 8
        s_add_u32 s64, s64, s65
        s_add_u32 s64, s64, {WS_X3}
        v_lshlrev_b32 v21, 4, v3
        v_add_u32 v20, v20, v21
        v_add_u32 v20, s64, v20
        v_cmp_lt_u32 vcc, 31, v1
        v_mov_b32 v25, s6
        v_mov_b32 v27, s6
        s_nop 3
        v_cndmask_b32 v24, v12, v14, vcc
        v_cndmask_b32 v26, v13, v15, vcc
        buffer_store_dwordx4 v[24:27], v20, s[16:19], 0 offen sc1
        """)
        self.stamp(9)
        I("""
        s_cmp_lg_u32 s3, 0
        s_cbranch_scc1 L_end
        """)
        I(f"""
        s_lshl_b32 s64, s2, 13
        s_add_u32 s64, s64, {WS_X3}
        v_lshlrev_b32 v20, 4, v1
        v_add_u32 v20, s64, v20
        v_add_u32 v21, 0x1000, v20
        s_lshr_b32 s64, s2, 2
        s_lshl_b32 s64, s64, 5
        s_and_b32 s65, s2, 3
        s_lshl_b32 s65, s65, 12
        s_add_u32 s64, s64, s65
        v_lshlrev_b32 v22, 1, v3
        v_add_u32 v22, s64, v22
        s_mov_b32 s24, s32
        s_and_b32 s25, s33, 0xffff
        s_mov_b32 s26, 16384
        s_mov_b32 s27, 0x20000
        buffer_load_ushort v28, v22, s[24:27], 0 offen
        buffer_load_ushort v29, v22, s[24:27], 0 offen offset:2048
        s_mov_b32 s28, s48
        s_and_b32 s29, s49, 0xffff
        s_mov_b32 s30, 16384
        s_mov_b32 s31, 0x20000
        s_mov_b32 s71, 0
        """)
        A("L_x3loop:")
        for i in range(8):
            I(f"buffer_load_dwordx4 v[{44+4*i}:{47+4*i}], v{20 + (i >> 2)}, s[16:19], 0 offen offset:{(i & 3)*1024} sc1")
        I("s_waitcnt vmcnt(0)")
        I("v_mov_b32 v30, 0")
        for i in range(8):
            I(f"""
            v_xor_b32 v31, s6, v{45+4*i}
            v_xor_b32 v32, s6, v{47+4*i}
            v_or3_b32 v30, v30, v31, v32
            """)
        I(f"""
        v_cmp_ne_u32 vcc, 0, v30
        s_add_u32 s71, s71, 1
        s_cbranch_vccz L_x3done
        s_cmp_lt_u32 s71, {SPIN_MAX}
        s_cbranch_scc1 L_x3loop
        """)
        A("L_x3done:")
        for i in range(1, 8):
            I(f"v_add_f32 v44, v44, v{44+4*i}")
            I(f"v_add_f32 v46, v46, v{46+4*i}")
        row_allreduce(44, 31)
        row_allreduce(46, 31)
        I("""
        v_lshlrev_b32 v28, 16, v28
        v_lshlrev_b32 v29, 16, v29
        v_add_f32 v44, v44, v28
        v_add_f32 v46, v46, v29
        v_cvt_pk_bf16_f32 v44, v44, v46
        v_lshrrev_b32 v45, 16, v44
        s_mov_b64 exec, 0xffff
        buffer_store_short v44, v22, s[28:31], 0 offen
        buffer_store_short v45, v22, s[28:31], 0 offen offset:2048
        s_mov_b64 exec, -1
        """)
        self.stamp(10)
        I("""
        s_cmp_lg_u32 s2, 0
        s_cbranch_scc1 L_end
        v_mov_b32 v30, s6
        s_mov_b64 exec, 1
        buffer_store_dword v30, off, s[16:19], 0 sc1
        s_branch L_end
        """)
        A("L_poller:")
        self.stamp(0)
        I(f"""
        s_lshl_b32 s64, s5, 3
        s_add_u32 s64, s64, s4
        s_lshl_b32 s65, s64, 13
        s_add_u32 s65, s65, {WS_X1Q}
        v_lshlrev_b32 v20, 4, v1
        v_add_u32 v20, s65, v20
        v_add_u32 v21, 0x1000, v20
        s_waitcnt vmcnt(0)
        v_readfirstlane_b32 s6, v5
        s_nop 3
        s_add_u32 s6, s6, 1
        s_barrier
        """)
        for phase in (0, 1):
            lab = f"L_p{phase}"
            I("s_mov_b32 s71, 0")
            A(f"{lab}loop:")
            for i in range(8):
                I(f"buffer_load_dwordx4 v[{44+4*i}:{47+4*i}], v{20 + (i >> 2)}, s[16:19], 0 offen offset:{(i & 3)*1024} sc1")
            I("s_waitcnt vmcnt(0)")
            I("v_mov_b32 v30, 0")
            for i in range(8):
                I(f"""
                v_xor_b32 v31, s6, v{45+4*i}
                v_xor_b32 v32, s6, v{47+4*i}
                v_or3_b32 v30, v30, v31, v32
                """)
            I(f"""
            v_cmp_ne_u32 vcc, 0, v30
            s_add_u32 s71, s71, 1
            s_cbranch_vccz {lab}done
            s_cmp_lt_u32 s71, {SPIN_MAX}
            s_cbranch_scc1 {lab}loop
            """)
            A(f"{lab}done:")
            for i in range(1, 8):
                I(f"v_add_f32 v44, v44, v{44+4*i}")
                I(f"v_add_f32 v46, v46, v{46+4*i}")
            if phase == 0:
                I(f"""
                v_cvt_pk_bf16_f32 v44, v44, v46
                v_lshlrev_b32 v22, 2, v1
                v_add_u32 v22, {QV}, v22
                ds_write_b32 v22, v44
                s_waitcnt lgkmcnt(0)
                """)
                self.stamp(3)
                I("s_barrier")
                I(f"""
                v_add_u32 v20, {WS_X1H - WS_X1Q}, v20
                v_add_u32 v21, {WS_X1H - WS_X1Q}, v21
                """)
            else:
                I(f"""
                v_max_f32 v44, 0, v44
                v_max_f32 v46, 0, v46
                v_cvt_pk_bf16_f32 v44, v44, v46
                v_mov_b32 v45, s6
                s_lshl_b32 s65, s64, 9
                s_add_u32 s65, s65, {WS_X2H}
                v_lshlrev_b32 v22, 3, v1
                v_add_u32 v22, s65, v22
                buffer_store_dwordx2 v[44:45], v22, s[16:19], 0 offen sc1
                """)
                self.stamp(4)
        A("L_end:")
        A("  s_endpgm")
        A('.section .rodata,"a"')
        A(".p2align 6")
        A(f".amdhsa_kernel {KNAME}")
        A("  .amdhsa_next_free_vgpr 168")
        A("  .amdhsa_next_free_sgpr 96")
        A("  .amdhsa_accum_offset 168")
        A("  .amdhsa_group_segment_fixed_size 0")
        A("  .amdhsa_kernarg_size 88")
        A("  .amdhsa_user_sgpr_count 2")
        A("  .amdhsa_user_sgpr_kernarg_segment_ptr 1")
        A("  .amdhsa_system_sgpr_workgroup_id_x 1")
        A("  .amdhsa_float_denorm_mode_32 3")
        A(".end_amdhsa_kernel")
        return '\n'.join(self.L) + '\n'


if __name__ == '__main__':
    out = sys.argv[1] if len(sys.argv) > 1 else 'k1.s'
    kw = {}
    for a in sys.argv[2:]:
        k, v = a.split('=')
        kw[k] = (v == '1') if v in ('0', '1') else v.replace('+', ' ')
    open(out, 'w').write(Gen(**kw).gen())
```

```python
import sys

KNAME = 'parallel_sum__mha_block_cached__dense_activation_relu__decode_kernel'

HEADER_COMMENTS = """; Kernarg layout for this problem (88 bytes, ptrs only, base s[0:1]):
"""

WS_X1Q = 0x100000
WS_X1H = 0x300000
WS_X2O = 0x500000
WS_X2H = 0x520000
WS_PRG = 0x580000
WS_GP = 0x590000
WS_X3 = 0x600000
WS_TS = 0x800000
WS_SIZE = 0xA00000

T_WQ, T_W1, T_WO, T_W2 = 0, 32768, 65536, 98304
XN = 131072
XN_RS = 272
QV = XN + 8 * XN_RS
OBUF = QV + 256
MLB = OBUF + 4096
A2 = MLB + 64
A2_RS = 272
FL = A2 + 8 * 528
LDS_ALLOC = 143360
SPIN_MAX = 400000
Ws = 4


class Gen:
    def __init__(self, ts=False, kvflags='nt', wflags='nt', R=8, T1=32, T2=32, T3=32, sleep_h=16, map='mix',
                 lstart='E', light=1, pretouch=0, ctl=1, TH=0, KD=3, msleep=12, MEXIT=10, tlb=0, x2sleep=1, x3sleep=1,
                 hsleep=64, outsc='', levels='', NB=1, pre=1, warm=0, trace=0, hat=32, tat=96, pwarm=1, hflags='sc1 nt', thflags='sc1 nt', nohjob=0, stH='sc1 nt', stX2H='sc1 nt', stQ='sc1', ldQ='sc1', stO='sc1', ldO='sc1', st3='sc1', ld3='sc1', stout='', prgst='', noprg=0, gctl=0, GG=1, gst='sc1 nt', gld='sc1 nt', vflags=None, hearly=0, hdbg=''):
        self.hdbg = hdbg
        self.hearly = int(hearly)
        self.vflags = vflags
        self.gctl = int(gctl); self.GG = int(GG); self.gst = gst; self.gld = gld
        self.prgst = prgst; self.noprg = int(noprg)
        self.ldQ = ldQ; self.stO = stO; self.ldO = ldO; self.st3 = st3; self.ld3 = ld3
        self.stH = stH; self.stX2H = stX2H; self.stQ = stQ
        self.hflags = hflags; self.thflags = thflags; self.nohjob = int(nohjob)
        self.hat = int(hat); self.tat = int(tat); self.pwarm = int(pwarm)
        self.trace = int(trace)
        self.warm = int(warm)
        self.pre = int(pre)
        self.NB = int(NB)
        self.levels = [int(x) for x in str(levels).split('/')] if levels else []
        self.L = []
        self.ts = ts in (True, '1', 1)
        self.kvflags = kvflags; self.wflags = wflags
        self.R = int(R); self.T = (int(T1), int(T2), int(T3))
        self.sleep_h = int(sleep_h); self.map = map; self.lstart = lstart; self.light = int(light)
        self.pretouch = int(pretouch); self.ctl = int(ctl); self.TH = int(TH); self.KD = int(KD)
        self.msleep = int(msleep); self.MEXIT = int(MEXIT); self.tlb = int(tlb)
        self.x2sleep = int(x2sleep); self.x3sleep = int(x3sleep); self.hsleep = int(hsleep); self.outsc = outsc
        self.nlab = 0

    def A(self, s):
        self.L.append(s)

    def I(self, s):
        for line in s.strip('\n').split('\n'):
            line = line.strip()
            if line:
                self.L.append(line if line.endswith(':') else '  ' + line)

    def stamp(self, idx):
        if self.ts:
            self.I(f"""
            s_memrealtime s[76:77]
            s_waitcnt lgkmcnt(0)
            s_mov_b32 s{84+idx}, s76
            """)

    def stampflush(self):
        if not self.ts:
            return
        self.I("s_mov_b64 exec, -1")
        for i in range(12):
            self.I(f"v_writelane_b32 v166, s{84+i}, {i}")
        self.I("""
        v_lshlrev_b32 v167, 2, v1
        v_add_u32 v167, s78, v167
        s_mov_b64 exec, 0xfff
        buffer_store_dword v166, v167, s[16:19], 0 offen
        s_mov_b64 exec, -1
        """)

    def row_allreduce(self, v, t, op='v_add_f32'):
        self.I(f"""
        v_mov_b32 v{t}, v{v}
        s_nop 1
        v_permlane16_swap_b32 v{v}, v{t}
        {op} v{v}, v{v}, v{t}
        v_mov_b32 v{t}, v{v}
        s_nop 1
        v_permlane32_swap_b32 v{v}, v{t}
        {op} v{v}, v{v}, v{t}
        """)

    def row_allreduce2(self, v0, t0, v1, t1, op='v_add_f32'):
        for sw in ('v_permlane16_swap_b32', 'v_permlane32_swap_b32'):
            self.I(f"""
            v_mov_b32 v{t0}, v{v0}
            v_mov_b32 v{t1}, v{v1}
            s_nop 0
            {sw} v{v0}, v{t0}
            {sw} v{v1}, v{t1}
            {op} v{v0}, v{v0}, v{t0}
            {op} v{v1}, v{v1}, v{t1}
            """)

    def wave_allreduce(self, v, t, op='v_add_f32'):
        for ror in (8, 4, 2, 1):
            self.I("s_nop 1")
            self.I(f"{op}_dpp v{v}, v{v}, v{v} row_ror:{ror} row_mask:0xf bank_mask:0xf")
        self.row_allreduce(v, t, op)

    def lds_spin(self, off, val, vtmp, sleep=1, ge=False):
        n = self.nlab; self.nlab += 1
        cmp = f"v_cmp_gt_u32 vcc, {val}, v{vtmp}" if ge else f"v_cmp_ne_u32 vcc, {val}, v{vtmp}"
        self.I(f"""
        s_mov_b32 s71, 0
        L_sp{n}:
        ds_read_b32 v{vtmp}, v40 offset:{off}
        s_add_u32 s71, s71, 1
        s_waitcnt lgkmcnt(0)
        {cmp}
        s_cbranch_vccz L_sp{n}_done
        """)
        if sleep:
            self.I(f"s_sleep {sleep}")
        self.I(f"""
        s_cmp_lt_u32 s71, {SPIN_MAX*4}
        s_cbranch_scc1 L_sp{n}
        L_sp{n}_done:
        """)

    def lds_inc(self, off):
        self.I(f"""
        s_mov_b64 exec, 1
        ds_add_u32 v40, v41 offset:{off}
        s_mov_b64 exec, -1
        """)

    def tagcheck(self, dst, n, acc, t0, t1):
        I = self.I
        I(f"v_xor_b32 v{acc}, s6, v{dst+1}")
        I(f"v_xor_b32 v{t0}, s6, v{dst+3}")
        I(f"v_or_b32 v{acc}, v{acc}, v{t0}")
        for i in range(1, n):
            I(f"""
            v_xor_b32 v{t0}, s6, v{dst+1+4*i}
            v_xor_b32 v{t1}, s6, v{dst+3+4*i}
            v_or3_b32 v{acc}, v{acc}, v{t0}, v{t1}
            """)

    def poll8(self, lab, base0, base1, dst, sleep=0, masked=False, flags='sc1'):
        I, A = self.I, self.A
        I("s_mov_b32 s71, 0")
        A(f"{lab}_loop:")
        for i in range(8):
            I(f"buffer_load_dwordx4 v[{dst+4*i}:{dst+4*i+3}], v{base0 if i < 4 else base1}, s[16:19], 0 offen offset:{(i & 3)*1024} {flags}")
        I("s_waitcnt vmcnt(0)")
        self.tagcheck(dst, 8, 30, 31, 32)
        I(f"""
        v_cmp_ne_u32 vcc, 0, v30
        s_add_u32 s71, s71, 1
        s_cbranch_vccz {lab}_done
        """)
        if masked:
            I("s_mov_b64 exec, vcc")
        if sleep:
            I(f"s_sleep {sleep}")
        I(f"""
        s_cmp_lt_u32 s71, {SPIN_MAX}
        s_cbranch_scc1 {lab}_loop
        """)
        A(f"{lab}_done:")
        if masked:
            I("s_mov_b64 exec, -1")
        for i in range(1, 8):
            I(f"v_add_f32 v{dst}, v{dst}, v{dst+4*i}")
            I(f"v_add_f32 v{dst+2}, v{dst+2}, v{dst+2+4*i}")

    def x1q_addr(self, dst, base_const, ntile_shift7_sgpr):
        self.I(f"""
        v_and_b32 v28, 1, v2
        v_lshlrev_b32 v28, 2, v28
        v_lshrrev_b32 v29, 1, v2
        v_lshlrev_b32 v29, 1, v29
        v_add_u32 v28, v28, v29
        v_and_b32 v29, 1, v3
        v_add_u32 v28, v28, v29
        v_lshlrev_b32 v28, 13, v28
        s_lshl_b32 s64, s5, 16
        s_lshl_b32 s65, s4, 10
        s_add_u32 s64, s64, s65
        """)
        if ntile_shift7_sgpr:
            self.I(f"""
            s_lshl_b32 s65, {ntile_shift7_sgpr}, 7
            s_add_u32 s64, s64, s65
            """)
        self.I(f"""
        s_add_u32 s64, s64, {base_const}
        v_and_b32 v29, 14, v3
        v_lshlrev_b32 v29, 3, v29
        v_add_u32 v28, v28, v29
        v_add_u32 v{dst}, s64, v28
        v_and_b32 v29, 1, v3
        v_cmp_eq_u32 s[80:81], 1, v29
        """)

    def x1q_store(self, D, vaddr):
        self.I(f"""
        v_cndmask_b32 v24, v{D}, v{D+2}, vcc
        v_cndmask_b32 v25, v{D+1}, v{D+3}, vcc
        s_nop 1
        v_mov_b32_dpp v26, v24 quad_perm:[1,0,3,2] row_mask:0xf bank_mask:0xf
        v_mov_b32_dpp v27, v25 quad_perm:[1,0,3,2] row_mask:0xf bank_mask:0xf
        s_nop 0
        v_cndmask_b32 v32, v24, v27, s[80:81]
        v_cndmask_b32 v34, v26, v25, s[80:81]
        buffer_store_dwordx4 v[32:35], v{vaddr}, s[16:19], 0 offen {self.stQ}
        """)

    def tagcheck4(self, dst, n, acc, t0, t1):
        I = self.I
        I(f"v_xor_b32 v{acc}, s79, v{dst}")
        I(f"v_xor_b32 v{t0}, s79, v{dst+1}")
        I(f"v_or_b32 v{acc}, v{acc}, v{t0}")
        for i in range(2, 4 * n, 2):
            I(f"""
            v_xor_b32 v{t0}, s79, v{dst+i}
            v_xor_b32 v{t1}, s79, v{dst+i+1}
            v_or3_b32 v{acc}, v{acc}, v{t0}, v{t1}
            """)
        I(f"v_and_b32 v{acc}, 0xff, v{acc}")

    def poll4(self, lab, base, dst, sleep=0, flags='sc1'):
        I, A = self.I, self.A
        I("s_mov_b32 s71, 0")
        A(f"{lab}_loop:")
        for i in range(4):
            I(f"buffer_load_dwordx4 v[{dst+4*i}:{dst+4*i+3}], v{base}, s[16:19], 0 offen offset:{i*1024} {flags}")
        I("s_waitcnt vmcnt(0)")
        self.tagcheck4(dst, 4, 30, 31, 32)
        I(f"""
        v_cmp_ne_u32 vcc, 0, v30
        s_add_u32 s71, s71, 1
        s_cbranch_vccz {lab}_done
        """)
        if sleep:
            I(f"s_sleep {sleep}")
        I(f"""
        s_cmp_lt_u32 s71, {SPIN_MAX}
        s_cbranch_scc1 {lab}_loop
        """)
        A(f"{lab}_done:")
        for e in range(16):
            I(f"v_and_b32 v{dst+e}, 0xffffff00, v{dst+e}")
        for e in range(4):
            I(f"v_add_f32 v{dst+e}, v{dst+e}, v{dst+4+e}")
            I(f"v_add_f32 v{dst+8+e}, v{dst+8+e}, v{dst+12+e}")
        for e in range(4):
            I(f"v_add_f32 v{dst+e}, v{dst+e}, v{dst+8+e}")

    def half_reduce4(self, v, t):
        for e in range(4):
            self.I(f"v_mov_b32 v{t+e}, v{v+e}")
        for e in range(4):
            self.I(f"v_permlane32_swap_b32 v{v+e}, v{t+e}")
        for e in range(4):
            self.I(f"v_add_f32 v{v+e}, v{v+e}, v{t+e}")

    def x1_addr(self, dst, base_const, col_sgpr_expr):
        self.I(f"""
        v_and_b32 v28, 1, v2
        v_lshlrev_b32 v28, 2, v28
        v_and_b32 v29, 3, v3
        v_add_u32 v28, v28, v29
        v_lshlrev_b32 v28, 12, v28
        v_lshrrev_b32 v29, 2, v3
        v_lshlrev_b32 v29, 4, v29
        v_add_u32 v28, v28, v29
        s_lshl_b32 s64, s5, 15
        s_lshl_b32 s65, s4, 9
        s_add_u32 s64, s64, s65
        """)
        if col_sgpr_expr:
            self.I(f"""
            s_lshl_b32 s65, {col_sgpr_expr}, 6
            s_add_u32 s64, s64, s65
            """)
        else:
            self.I("""
            v_lshrrev_b32 v29, 1, v2
            v_lshlrev_b32 v29, 6, v29
            v_add_u32 v28, v28, v29
            """)
        self.I(f"""
        s_add_u32 s64, s64, {base_const}
        v_add_u32 v{dst}, s64, v28
        v_and_b32 v29, 1, v3
        v_cmp_eq_u32 s[80:81], 1, v29
        v_and_b32 v29, 2, v3
        v_cmp_eq_u32 s[82:83], 2, v29
        """)

    def quad_transpose_tag(self, D, t):
        I = self.I
        x1 = "quad_perm:[1,0,3,2] row_mask:0xf bank_mask:0xf"
        x2 = "quad_perm:[2,3,0,1] row_mask:0xf bank_mask:0xf"
        I(f"""
        v_mov_b32_dpp v{t}, v{D+1} {x1}
        v_mov_b32_dpp v{t+1}, v{D} {x1}
        v_mov_b32_dpp v{t+2}, v{D+3} {x1}
        v_mov_b32_dpp v{t+3}, v{D+2} {x1}
        v_cndmask_b32 v{D}, v{D}, v{t}, s[80:81]
        v_cndmask_b32 v{D+1}, v{t+1}, v{D+1}, s[80:81]
        v_cndmask_b32 v{D+2}, v{D+2}, v{t+2}, s[80:81]
        v_cndmask_b32 v{D+3}, v{t+3}, v{D+3}, s[80:81]
        s_nop 0
        v_mov_b32_dpp v{t}, v{D+2} {x2}
        v_mov_b32_dpp v{t+1}, v{D+3} {x2}
        v_mov_b32_dpp v{t+2}, v{D} {x2}
        v_mov_b32_dpp v{t+3}, v{D+1} {x2}
        v_cndmask_b32 v{D}, v{D}, v{t}, s[82:83]
        v_cndmask_b32 v{D+1}, v{D+1}, v{t+1}, s[82:83]
        v_cndmask_b32 v{D+2}, v{t+2}, v{D+2}, s[82:83]
        v_cndmask_b32 v{D+3}, v{t+3}, v{D+3}, s[82:83]
        v_add_u32 v{D}, 0x80, v{D}
        v_add_u32 v{D+1}, 0x80, v{D+1}
        v_add_u32 v{D+2}, 0x80, v{D+2}
        v_add_u32 v{D+3}, 0x80, v{D+3}
        v_and_or_b32 v{D}, v{D}, v33, s79
        v_and_or_b32 v{D+1}, v{D+1}, v33, s79
        v_and_or_b32 v{D+2}, v{D+2}, v33, s79
        v_and_or_b32 v{D+3}, v{D+3}, v33, s79
        """)

    def tr_base(self, dst, ntile_x2, t0):
        self.I(f"""
        v_lshrrev_b32 v{t0}, 2, v3
        v_and_b32 v{t0+1}, 3, v3
        v_lshlrev_b32 v{t0+2}, 3, v2
        v_add_u32 v{t0+2}, v{t0+2}, v{t0}
        v_lshlrev_b32 v{t0+2}, 8, v{t0+2}
        v_lshrrev_b32 v{t0+3}, 1, v{t0+1}
        v_add_u32 v{t0+3}, {ntile_x2}, v{t0+3}
        v_lshlrev_b32 v{t0+4}, 1, v{t0}
        v_and_b32 v{t0+5}, 1, v2
        v_lshlrev_b32 v{t0+5}, 3, v{t0+5}
        v_add_u32 v{t0+4}, v{t0+4}, v{t0+5}
        v_xor_b32 v{t0+3}, v{t0+3}, v{t0+4}
        v_lshlrev_b32 v{t0+3}, 4, v{t0+3}
        v_add_u32 v{t0+2}, v{t0+2}, v{t0+3}
        v_and_b32 v{t0+1}, 1, v{t0+1}
        v_lshlrev_b32 v{t0+1}, 3, v{t0+1}
        v_add_u32 v{dst}, v{t0+2}, v{t0+1}
        """)

    def gen(self):
        A, I = self.A, self.I
        R = self.R
        A(HEADER_COMMENTS.rstrip('\n'))
        A("; ---------------------------------------------------------------------------------------------------------\n; ---------------------------------------------------------------------------------------------------------")
        A(f"; @launch grid=(256,1,1) block=(640,1,1) lds={LDS_ALLOC}")
        A('.amdgcn_target "amdgcn-amd-amdhsa--gfx950"')
        A(".text")
        A(f".globl {KNAME}")
        A(".p2align 8")
        A(f".type {KNAME},@function")
        A(f"{KNAME}:")
        MAP = {'bh': "s_lshr_b32 s4, s2, 5\n        s_and_b32 s5, s2, 31",
               'hb': "s_and_b32 s4, s2, 7\n        s_lshr_b32 s5, s2, 3",
               'mix': "s_lshr_b32 s4, s2, 3\n        s_and_b32 s4, s4, 7\n        s_lshr_b32 s5, s2, 6\n        s_lshl_b32 s5, s5, 3\n        s_and_b32 s7, s2, 7\n        s_add_u32 s5, s5, s7"}[self.map]
        I(f"""
        s_cmp_ge_u32 s2, 256
        s_cbranch_scc1 L_exit
        s_load_dwordx16 s[32:47], s[0:1], 0
        s_load_dwordx2 s[48:49], s[0:1], 64
        s_load_dwordx2 s[50:51], s[0:1], 80
        v_lshrrev_b32 v4, 6, v0
        v_and_b32 v1, 63, v0
        v_readfirstlane_b32 s3, v4
        v_lshrrev_b32 v2, 4, v1
        v_and_b32 v3, 15, v1
        {MAP}
        s_lshl_b32 s73, s4, 5
        s_add_u32 s73, s73, s5
        s_mov_b32 s72, 0x3fb8aa3b
        v_lshlrev_b32 v8, 1, v2
        v_xor_b32 v8, v3, v8
        v_lshlrev_b32 v8, 4, v8
        v_xor_b32 v9, 128, v8
        v_mov_b32 v40, {FL}
        v_mov_b32 v41, 1
        s_waitcnt lgkmcnt(0)
        s_mov_b32 s16, s50
        s_and_b32 s17, s51, 0xffff
        s_mov_b32 s18, {WS_SIZE}
        s_mov_b32 s19, 0x20000
        buffer_load_dword v5, off, s[16:19], 0 sc1
        """)
        if self.ts:
            I(f"""
            s_lshl_b32 s78, s2, 4
            s_add_u32 s78, s78, s3
            s_lshl_b32 s78, s78, 6
            s_add_u32 s78, s78, {WS_TS}
            """)
        self.stamp(0)
        I("""
        s_cmp_eq_u32 s3, 8
        s_cbranch_scc1 L_poller
        s_cmp_eq_u32 s3, 9
        s_cbranch_scc1 L_loader
        """)
        I(f"""
        s_mov_b32 s24, s32
        s_and_b32 s25, s33, 0xffff
        s_mov_b32 s26, 16384
        s_mov_b32 s27, 0x20000
        s_lshl_b32 s7, s3, 11
        v_lshlrev_b32 v6, 4, v1
        v_add_u32 v6, s7, v6
        s_lshl_b32 s64, s4, 8
        s_add_u32 s64, s64, s7
        v_lshlrev_b32 v7, 4, v3
        v_add_u32 v7, s64, v7
        buffer_load_dwordx4 v[108:111], v6, s[24:27], 0 offen
        buffer_load_dwordx4 v[112:115], v6, s[24:27], 0 offen offset:1024
        buffer_load_dwordx4 v[116:119], v7, s[24:27], 0 offen
        s_lshl_b32 s64, s4, 20
        s_lshl_b32 s65, s5, 8
        s_add_u32 s64, s64, s65
        s_add_u32 s20, s38, s64
        s_addc_u32 s21, s39, 0
        s_and_b32 s21, s21, 0xffff
        s_mov_b32 s22, {127*8192+256}
        s_mov_b32 s23, 0x20000
        v_lshlrev_b32 v10, 13, v2
        v_add_u32 v11, v10, v9
        v_add_u32 v10, v10, v8
        s_lshl_b32 s64, s3, 17
        s_lshl_b32 s65, s3, 12
        """)
        for i in range(4):
            I(f"""
            s_mov_b32 m0, s65
            s_add_u32 s65, s65, 1024
            buffer_load_dwordx4 v{10 + ((i >> 1) & 1)}, s[20:23], s64 offen {self.wflags} lds
            s_add_u32 s64, s64, {4*8192}
            """)
        I("""
        s_cmp_lg_u32 s3, 0
        s_cbranch_scc1 L_noinit
        v_mov_b32 v20, 0
        v_mov_b32 v21, 0
        v_mov_b32 v22, 0
        v_mov_b32 v23, 0
        ds_write_b128 v40, v[20:23]
        ds_write_b128 v40, v[20:23] offset:16
        ds_write_b128 v40, v[20:23] offset:32
        ds_write_b128 v40, v[20:23] offset:48
        s_waitcnt lgkmcnt(0)
        L_noinit:
        """)
        I(f"""
        s_lshl_b32 s64, s73, 20
        s_add_u32 s8, s34, s64
        s_addc_u32 s9, s35, 0
        s_and_b32 s9, s9, 0xffff
        s_mov_b32 s10, 0x100000
        s_mov_b32 s11, 0x20000
        s_add_u32 s12, s36, s64
        s_addc_u32 s13, s37, 0
        s_and_b32 s13, s13, 0xffff
        s_mov_b32 s14, 0x100000
        s_mov_b32 s15, 0x20000
        s_mul_i32 s7, s3, {self.NB * 1024}
        v_lshlrev_b32 v19, 4, v1
        v_add_u32 v19, s7, v19
        v_mov_b32 v42, v19
        v_mov_b32 v158, v19
        s_barrier
        s_cmp_ge_u32 s3, {Ws}
        s_cbranch_scc1 L_noring
        """)
        NB = self.NB
        STEP = Ws * NB * 1024
        SLOT = [44 + 4 * NB * i for i in range(R)]

        def ldslot(base, srd, voff, fl=None):
            for i in range(NB):
                I(f"buffer_load_dwordx4 v[{base+4*i}:{base+4*i+3}], v{voff}, s[{srd}:{srd+3}], 0 offen offset:{1024*i} {self.kvflags if fl is None else fl}")
        EXTRA = [44 + 4 * NB * (R + i) for i in range(R)]
        assert NB == 1 and (EXTRA[-1] + 4 <= 108 or not self.pre) and SLOT[-1] + 4 <= 108
        for p in range(R):
            ldslot((EXTRA if self.pre else SLOT)[p], 8, 19)
            I(f"v_add_u32 v19, {STEP}, v19")
        I("v_mov_b32 v42, v19")
        A("L_noring:")
        I(f"""
        s_mul_i32 s7, s3, {XN_RS}
        s_add_u32 s7, s7, {XN}
        v_lshlrev_b32 v36, 4, v3
        v_add_u32 v36, s7, v36
        s_lshl_b32 s7, s3, 1
        """)
        self.tr_base(164, 's7', 28)
        I(f"""
        v_and_b32 v37, 7, v3
        v_mul_u32_u24 v37, {XN_RS}, v37
        v_lshlrev_b32 v38, 4, v2
        v_add_u32 v37, v37, v38
        v_add_u32 v37, {XN}, v37
        """)
        self.x1q_addr(39, WS_X1Q, 's3')
        I(f"""
        v_mov_b32 v21, 0xffff
        v_mov_b32 v22, 0xffff0000
        v_lshrrev_b32 v23, 1, v3
        v_cndmask_b32 v21, v21, v22, s[80:81]
        """)
        for j in range(4):
            I(f"""
            v_cmp_eq_u32 vcc, {j}, v23
            s_nop 1
            v_cndmask_b32 v{8+j}, 0, v21, vcc
            """)
        I(f"""
        v_mov_b32 v12, 0
        v_mov_b32 v13, 0
        v_mov_b32 v14, 0
        v_mov_b32 v15, 0
        v_mov_b32 v16, 0xff800000
        v_mov_b32 v17, 0xff800000
        v_mov_b32 v18, 0
        v_lshlrev_b32 v38, 4, v3
        v_add_u32 v38, {QV}, v38
        s_lshl_b32 s7, s3, 3
        s_add_u32 s7, s7, {MLB}
        v_mov_b32 v165, s7
        s_lshl_b32 s7, s3, 9
        s_add_u32 s7, s7, {OBUF}
        v_lshlrev_b32 v163, 5, v3
        v_lshlrev_b32 v28, 4, v2
        v_add_u32 v163, v163, v28
        v_add_u32 v163, s7, v163
        """)
        I(f"""
        s_cmp_ge_u32 s3, {Ws}
        s_cbranch_scc1 L_wx_t
        s_waitcnt vmcnt({4 + R*NB})
        s_branch L_wx_done
        L_wx_t:
        s_waitcnt vmcnt(4)
        L_wx_done:
        """)
        self.stamp(1)
        I("v_readfirstlane_b32 s6, v5")
        f = 132
        for e in range(8):
            I(f"""
            v_lshlrev_b32 v{f+2*e}, 16, v{108+e}
            v_and_b32 v{f+1+2*e}, 0xffff0000, v{108+e}
            """)
        I("s_add_u32 s6, s6, 1")
        I("s_and_b32 s79, s6, 0xff")
        I(f"""
        v_add_f32 v28, v{f}, v{f+1}
        v_add_f32 v29, v{f+2}, v{f+3}
        v_add_f32 v30, v{f+4}, v{f+5}
        v_add_f32 v31, v{f+6}, v{f+7}
        v_add_f32 v32, v{f+8}, v{f+9}
        v_add_f32 v33, v{f+10}, v{f+11}
        v_add_f32 v34, v{f+12}, v{f+13}
        v_add_f32 v35, v{f+14}, v{f+15}
        v_add_f32 v28, v28, v29
        v_add_f32 v30, v30, v31
        v_add_f32 v32, v32, v33
        v_add_f32 v34, v34, v35
        v_add_f32 v28, v28, v30
        v_add_f32 v32, v32, v34
        v_add_f32 v20, v28, v32
        """)
        self.wave_allreduce(20, 24)
        I("v_mul_f32 v20, 0x3a800000, v20")
        for e in range(16):
            I(f"v_sub_f32 v{f+e}, v{f+e}, v20")
        I(f"v_mul_f32 v22, v{f}, v{f}")
        I(f"v_mul_f32 v28, v{f+1}, v{f+1}")
        for e in range(2, 16, 2):
            I(f"v_fmac_f32 v22, v{f+e}, v{f+e}")
            I(f"v_fmac_f32 v28, v{f+e+1}, v{f+e+1}")
        I("v_add_f32 v22, v22, v28")
        self.wave_allreduce(22, 24)
        xb = 116
        I(f"""
        v_mul_f32 v22, 0x3a800000, v22
        v_cvt_pk_bf16_f32 v28, v20, v22
        v_lshlrev_b32 v20, 16, v28
        v_and_b32 v22, 0xffff0000, v28
        v_add_f32 v22, 0x3727c5ac, v22
        v_cvt_pk_bf16_f32 v22, v22, v22
        v_and_b32 v22, 0xffff0000, v22
        v_sqrt_f32 v22, v22
        """)
        for e in range(4):
            I(f"""
            v_lshlrev_b32 v{f+2*e}, 16, v{xb+e}
            v_and_b32 v{f+2*e+1}, 0xffff0000, v{xb+e}
            """)
        I("""
        v_cvt_pk_bf16_f32 v22, v22, v22
        v_and_b32 v22, 0xffff0000, v22
        v_rcp_f32 v22, v22
        """)
        for e in range(8):
            I(f"v_sub_f32 v{f+e}, v{f+e}, v20")
        for e in range(4):
            I(f"v_cvt_pk_bf16_f32 v{28+e}, v{f+2*e}, v{f+2*e+1}")
        for e in range(4):
            I(f"""
            v_lshlrev_b32 v{f+2*e}, 16, v{28+e}
            v_and_b32 v{f+2*e+1}, 0xffff0000, v{28+e}
            """)
        for e in range(8):
            I(f"v_mul_f32 v{f+e}, v{f+e}, v22")
        for e in range(4):
            I(f"v_cvt_pk_bf16_f32 v{f+8+e}, v{f+2*e}, v{f+2*e+1}")
        I(f"ds_write_b128 v36, v[{f+8}:{f+11}]")
        I(f"""
        v_mov_b32 v20, 0
        v_mov_b32 v21, 0
        v_mov_b32 v22, 0
        v_mov_b32 v23, 0
        v_mov_b32 v33, s6
        v_mov_b32 v35, s6
        s_cmp_ge_u32 s3, {Ws}
        s_cbranch_scc1 L_wt_t
        s_waitcnt vmcnt({R*NB}) lgkmcnt(0)
        s_branch L_wt_done
        L_wt_t:
        s_waitcnt vmcnt(0) lgkmcnt(0)
        L_wt_done:
        """)
        self.stamp(2)
        self.lds_inc(0)
        self.lds_spin(0, 8, 24, sleep=0)
        for s in range(4):
            I(f"ds_read_b128 v[{108+4*s}:{111+4*s}], v37 offset:{64*s}")
        for s in range(4):
            for u in range(2):
                b = 124 + 4 * s + 2 * u
                I(f"ds_read_b64_tr_b16 v[{b}:{b+1}], v164 offset:{T_WQ + s*8192 + u*1024}")
        I("v_cmp_lt_u32 vcc, 31, v1")
        for s in range(4):
            I(f"s_waitcnt lgkmcnt({6 - 2*s})")
            I(f"v_mfma_f32_16x16x32_bf16 v[20:23], v[{108+4*s}:{111+4*s}], v[{124+4*s}:{127+4*s}], v[20:23]")
        I("""
        s_nop 7
        s_nop 0
        """)
        self.x1q_store(20, 39)
        self.lds_inc(4)
        self.stamp(3)
        I(f"""
        s_cmp_ge_u32 s3, {Ws}
        s_cbranch_scc1 L_tcrew
        """)
        SC = T_WQ
        if self.ctl:
            I(f"""
            s_lshl_b32 s7, s3, 2
            s_add_u32 s7, s7, {FL + 16}
            v_mov_b32 v160, s7
            v_mov_b32 v161, 0
            v_mov_b32 v162, 0
            s_mov_b32 s74, 0
            """)
        I(f"""
        s_mul_i32 s7, s3, 2064
        s_add_u32 s7, s7, {SC}
        v_mul_u32_u24 v26, 516, v2
        v_add_u32 v26, s7, v26
        v_mov_b32 v27, v26
        """)
        if self.pre:
            self.lds_spin(52, 1, 24, sleep=1)
            for p in range(R):
                ldslot(SLOT[p], 8, 42)
                I(f"v_add_u32 v42, {STEP}, v42")
        self.lds_spin(8, 1, 24, sleep=0)
        NBLK = 256
        n1 = NBLK - (R if self.pre else 0)
        I(f"""
        ds_read_b128 v[4:7], v38
        s_mov_b32 s70, {n1}
        s_waitcnt lgkmcnt(0)
        """)
        self.stamp(4)
        if self.trace:
            I("s_mov_b32 s75, 0")
            I("v_mov_b32 v156, 0")

        def ringwait(tag, waitn):
            if self.ctl:
                I(f"""
                s_cmp_eq_u32 s74, 0
                s_cbranch_scc1 {tag}
                s_waitcnt vmcnt({max(waitn-self.KD, 0)})
                {tag}:
                """)
            I(f"s_waitcnt vmcnt({waitn})")

        def progress():
            if self.ctl:
                I("""
                v_add_u32 v161, 1, v161
                ds_write_b32 v160, v161
                """)

        def modefetch():
            if self.trace:
                I("""
                s_memrealtime s[76:77]
                s_waitcnt lgkmcnt(0)
                s_mov_b32 m0, s75
                s_add_u32 s75, s75, 1
                v_writelane_b32 v156, s76, m0
                """)
            if self.ctl:
                I("""
                s_waitcnt lgkmcnt(0)
                v_readfirstlane_b32 s74, v162
                ds_read_b32 v162, v40 offset:48
                """)

        def kblock(tag, Kb, wait, refill, scoff):
            if wait: ringwait(f"L_wk{tag}", R - 1)
            for dd in range(4):
                c = '0' if dd == 0 else "v20"
                I(f"v_dot2_f32_bf16 v20, v{Kb+dd}, v{4+dd}, {c}")
            if refill:
                I(f"""
                s_cmp_lg_u32 s70, {R}
                s_cbranch_scc1 L_nsw{tag}
                s_mov_b32 s8, s12
                s_mov_b32 s9, s13
                v_mov_b32 v42, v158
                L_nsw{tag}:
                """)
                ldslot(Kb, 8, 42)
                I(f"v_add_u32 v42, {STEP}, v42")
            else:
                I("s_nop 2")
            for n_, ror in enumerate((8, 4, 2, 1)):
                I(f"v_add_f32_dpp v20, v20, v20 row_ror:{ror} row_mask:0xf bank_mask:0xf")
                if n_ < 3:
                    I("s_nop 1")
            I(f"""
            v_cvt_pk_bf16_f32 v24, v20, v20
            v_lshlrev_b32 v20, 16, v24
            v_mul_f32 v20, 0x3db504f3, v20
            v_cvt_pk_bf16_f32 v24, v20, v20
            ds_write_b16 v26, v24 offset:{scoff}
            v_lshlrev_b32 v20, 16, v24
            v_max_f32 v16, v16, v20
            """)
            progress()

        if self.pre:
            I(f"s_waitcnt vmcnt({R})")
            for t in range(R):
                kblock(f"p{t}", EXTRA[t], False, False, 2 * t)
            I(f"v_add_u32 v26, {2 * R}, v26")
        A("L_loop1:")
        modefetch()
        for t in range(R):
            kblock(f"{t}", SLOT[t], True, True, 2 * t)
            I("s_sub_u32 s70, s70, 1")
            if t < R - 1:
                if n1 % R:
                    I("s_cmp_eq_u32 s70, 0")
                    I("s_cbranch_scc1 L_pass2")
            else:
                I(f"v_add_u32 v26, {2 * R}, v26")
                I("s_cmp_lg_u32 s70, 0")
                I("s_cbranch_scc1 L_loop1")
        A("L_pass2:")
        self.row_allreduce(16, 25, 'v_max_f32')
        I(f"""
        s_waitcnt lgkmcnt(0)
        ds_read_u16 v25, v27
        v_mul_f32 v17, s72, v16
        s_mov_b32 s70, {NBLK}
        """)
        s0 = n1 % R
        A("L_loop2:")
        modefetch()
        for t in range(R):
            Vb = SLOT[(s0 + t) % R]
            I(f"""
            s_waitcnt lgkmcnt({1 if (self.ctl and t == 0) else 0})
            v_lshlrev_b32 v20, 16, v25
            ds_read_u16 v25, v27 offset:{2 * (t + 1)}
            v_fma_f32 v20, v20, s72, -v17
            v_exp_f32 v20, v20
            s_nop 0
            v_cvt_pk_bf16_f32 v24, v20, v20
            v_add_f32 v18, v18, v20
            v_and_b32 v28, v24, v8
            v_and_b32 v29, v24, v9
            v_and_b32 v30, v24, v10
            v_and_b32 v31, v24, v11
            """)
            progress()
            ringwait(f"L_wv{t}", R - 1)
            I("s_nop 0")
            I(f"v_mfma_f32_16x16x32_bf16 v[12:15], v[28:31], v[{Vb}:{Vb+3}], v[12:15]")
            ldslot(Vb, 8, 42, self.vflags)
            I(f"v_add_u32 v42, {STEP}, v42")
            I("s_sub_u32 s70, s70, 1")
            if t < R - 1:
                if NBLK % R:
                    I("s_cmp_eq_u32 s70, 0")
                    I("s_cbranch_scc1 L_stail")
            else:
                I(f"v_add_u32 v27, {2 * R}, v27")
                I("s_cmp_lg_u32 s70, 0")
                I("s_cbranch_scc1 L_loop2")
        rare = []
        A("L_stail:")
        if self.trace:
            I(f"""
            s_lshl_b32 s64, s2, 2
            s_add_u32 s64, s64, s3
            s_lshl_b32 s64, s64, 9
            s_add_u32 s64, s64, {WS_TS + 0x80000}
            v_lshlrev_b32 v157, 2, v1
            v_add_u32 v157, s64, v157
            buffer_store_dword v156, v157, s[16:19], 0 offen
            """)
        self.stamp(5)
        self.row_allreduce(18, 25)
        I("""
        v_mov_b32 v16, v17
        v_mov_b32 v17, v18
        ds_write_b64 v165, v[16:17]
        s_mov_b32 exec_hi, 0
        ds_write_b128 v163, v[12:15]
        s_mov_b64 exec, -1
        s_waitcnt lgkmcnt(0)
        s_barrier
        s_branch L_end
        """)
        for t in rare:
            A(f"L_rare_{t}:")
            if self.NB == 1:
                I("v_mov_b32 v24, v20")
            self.row_allreduce(24, 25, 'v_max_f32')
            I(f"""
            v_max_f32 v16, v16, v24
            v_mul_f32 v25, s72, v16
            v_sub_f32 v26, v17, v25
            v_exp_f32 v26, v26
            v_mov_b32 v17, v25
            v_mul_f32 v12, v12, v26
            v_mul_f32 v13, v13, v26
            v_mul_f32 v14, v14, v26
            v_mul_f32 v15, v15, v26
            v_mul_f32 v18, v18, v26
            s_branch L_resume_{t}
            """)
        A("L_tcrew:")
        I("""
        s_sub_u32 s69, s3, 4
        s_lshl_b32 s7, s69, 2
        """)
        self.tr_base(20, 's7', 28)
        I("s_add_u32 s7, s7, 2")
        self.tr_base(21, 's7', 28)
        self.x1_addr(56, WS_X1H, None)
        I("""
        s_lshl_b32 s7, s69, 7
        v_add_u32 v56, s7, v56
        v_mov_b32 v33, 0xffffff00
        """)
        for t in range(8):
            I(f"v_mov_b32 v{44+t}, 0")
        self.lds_spin(56, 1, 28, sleep=2)
        for k, base in ((0, 20), (1, 21)):
            for s in range(4):
                for u in range(2):
                    b = 124 + 16 * k + 4 * s + 2 * u
                    I(f"ds_read_b64_tr_b16 v[{b}:{b+1}], v{base} offset:{T_W1 + s*8192 + u*1024}")
        I("""
        v_cmp_lt_u32 vcc, 31, v1
        s_waitcnt lgkmcnt(0)
        """)
        for s in range(4):
            I(f"v_mfma_f32_16x16x32_bf16 v[44:47], v[{108+4*s}:{111+4*s}], v[{124+4*s}:{127+4*s}], v[44:47]")
            I(f"v_mfma_f32_16x16x32_bf16 v[48:51], v[{108+4*s}:{111+4*s}], v[{140+4*s}:{143+4*s}], v[48:51]")
        I("""
        s_nop 7
        s_nop 0
        v_cndmask_b32 v44, v44, v48, vcc
        v_cndmask_b32 v45, v45, v49, vcc
        v_cndmask_b32 v46, v46, v50, vcc
        v_cndmask_b32 v47, v47, v51, vcc
        s_nop 0
        """)
        self.quad_transpose_tag(44, 52)
        I(f"buffer_store_dwordx4 v[44:47], v56, s[16:19], 0 offen {self.stH}")
        self.lds_inc(12)
        I(f"""
        v_add_u32 v20, 0x10000, v20
        v_add_u32 v21, 0x10000, v21
        s_lshl_b32 s64, s5, 12
        v_and_b32 v24, 31, v1
        v_lshlrev_b32 v24, 4, v24
        v_lshrrev_b32 v23, 5, v1
        v_lshlrev_b32 v23, 9, v23
        v_add_u32 v23, v23, v24
        s_lshl_b32 s65, s69, 10
        s_add_u32 s65, s65, s64
        s_add_u32 s65, s65, {WS_X2H}
        v_add_u32 v23, s65, v23
        v_subrev_u32 v22, {WS_X2H - WS_X2O}, v23
        v_lshrrev_b32 v25, 5, v1
        s_lshl_b32 s7, s69, 1
        v_add_u32 v25, s7, v25
        v_mul_u32_u24 v25, {A2_RS}, v25
        v_and_b32 v28, 31, v1
        v_lshlrev_b32 v28, 3, v28
        v_add_u32 v25, v25, v28
        v_add_u32 v25, {A2}, v25
        v_and_b32 v26, 7, v3
        v_mul_u32_u24 v26, {A2_RS}, v26
        v_lshlrev_b32 v28, 4, v2
        v_add_u32 v26, v26, v28
        v_add_u32 v26, {A2}, v26
        v_lshrrev_b32 v27, 1, v2
        v_lshlrev_b32 v27, 14, v27
        v_and_b32 v28, 1, v2
        v_lshlrev_b32 v28, 13, v28
        v_add_u32 v27, v27, v28
        v_lshrrev_b32 v28, 3, v3
        v_lshlrev_b32 v28, 12, v28
        v_add_u32 v27, v27, v28
        v_and_b32 v28, 7, v3
        v_lshlrev_b32 v28, 4, v28
        v_add_u32 v27, v27, v28
        s_lshl_b32 s64, s4, 17
        s_lshl_b32 s65, s69, 15
        s_add_u32 s64, s64, s65
        s_lshl_b32 s65, s5, 7
        s_add_u32 s64, s64, s65
        s_add_u32 s64, s64, {WS_X3}
        v_add_u32 v27, s64, v27
        v_add_u32 v37, {OBUF}, v24
        s_lshl_b32 s64, s5, 3
        s_add_u32 s64, s64, s4
        s_lshl_b32 s64, s64, 9
        s_add_u32 s64, s64, {WS_X2O}
        v_add_u32 v38, s64, v24
        s_lshl_b32 s64, s73, 12
        s_add_u32 s64, s64, {WS_X3}
        v_lshlrev_b32 v39, 4, v1
        v_add_u32 v39, s64, v39
        s_lshr_b32 s64, s73, 2
        s_lshl_b32 s64, s64, 5
        s_and_b32 s65, s73, 1
        s_lshl_b32 s65, s65, 4
        s_add_u32 s64, s64, s65
        s_and_b32 s65, s73, 2
        s_lshl_b32 s65, s65, 12
        s_add_u32 s64, s64, s65
        v_and_b32 v43, 7, v1
        v_lshlrev_b32 v43, 1, v43
        v_add_u32 v43, s64, v43
        v_add_u32 v42, 0x1000, v43
        buffer_load_ushort v156, v43, s[24:27], 0 offen
        buffer_load_ushort v157, v43, s[24:27], 0 offen offset:2048
        buffer_load_ushort v158, v42, s[24:27], 0 offen
        buffer_load_ushort v159, v42, s[24:27], 0 offen offset:2048
        s_mov_b32 s28, s48
        s_and_b32 s29, s49, 0xffff
        s_mov_b32 s30, 16384
        s_mov_b32 s31, 0x20000
        v_mov_b32 v12, 0
        v_mov_b32 v13, 0
        v_mov_b32 v14, 0
        v_mov_b32 v15, 0
        v_mov_b32 v16, 0
        v_mov_b32 v17, 0
        v_mov_b32 v18, 0
        v_mov_b32 v19, 0
        """)
        self.lds_spin(32, 1, 28, sleep=8)
        for k, base in ((0, 20), (1, 21)):
            for s in range(4):
                for u in range(2):
                    b = 44 + 16 * k + 4 * s + 2 * u
                    I(f"ds_read_b64_tr_b16 v[{b}:{b+1}], v{base} offset:{T_WO - 65536 + s*8192 + u*1024}")
        I("s_waitcnt lgkmcnt(0)")
        for k, base in ((0, 20), (1, 21)):
            for s in range(4):
                for u in range(2):
                    b = 76 + 16 * k + 4 * s + 2 * u
                    I(f"ds_read_b64_tr_b16 v[{b}:{b+1}], v{base} offset:{T_W2 - 65536 + s*8192 + u*1024}")
        self.lds_spin(16, 2 * self.tat, 28, sleep=64, ge=True)
        I(f"""
        s_mov_b32 s71, 0
        L_th:
        buffer_load_dwordx4 v[108:111], v23, s[16:19], 0 offen {self.thflags}
        s_waitcnt vmcnt(0)
        v_xor_b32 v28, s6, v109
        v_xor_b32 v29, s6, v111
        v_or_b32 v28, v28, v29
        v_cmp_ne_u32 vcc, 0, v28
        s_add_u32 s71, s71, 1
        s_cbranch_vccz L_th_done
        s_sleep 32
        s_cmp_lt_u32 s71, {SPIN_MAX}
        s_cbranch_scc1 L_th
        L_th_done:
        ds_write2_b32 v25, v108, v110 offset0:0 offset1:1
        s_waitcnt lgkmcnt(0)
        """)
        self.lds_inc(40)
        self.lds_spin(40, 4, 28, sleep=2)
        for s in range(4):
            I(f"ds_read_b128 v[{108+4*s}:{111+4*s}], v26 offset:{64*s}")
        I("s_waitcnt lgkmcnt(0)")
        for s in range(4):
            I(f"v_mfma_f32_16x16x32_bf16 v[12:15], v[{108+4*s}:{111+4*s}], v[{76+4*s}:{79+4*s}], v[12:15]")
            I(f"v_mfma_f32_16x16x32_bf16 v[16:19], v[{108+4*s}:{111+4*s}], v[{92+4*s}:{95+4*s}], v[16:19]")
        I(f"""
        v_mov_b32 v141, s6
        v_mov_b32 v143, s6
        v_mov_b32 v33, 0xffffff00
        v_mov_b32 v36, {MLB}
        v_cmp_lt_u32 s[82:83], 31, v1
        s_barrier
        """)
        self.stamp(6)
        I("""
        s_cmp_lg_u32 s3, 4
        s_cbranch_scc1 L_x2
        """)
        I("""
        ds_read_b128 v[108:111], v36
        ds_read_b128 v[112:115], v36 offset:16
        """)
        for w in range(4):
            I(f"ds_read_b128 v[{116+4*w}:{119+4*w}], v37 offset:{512*w}")
        I("""
        s_waitcnt lgkmcnt(4)
        v_max3_f32 v28, v108, v110, v112
        v_max_f32 v28, v28, v114
        v_sub_f32 v108, v108, v28
        v_sub_f32 v110, v110, v28
        v_sub_f32 v112, v112, v28
        v_sub_f32 v114, v114, v28
        v_exp_f32 v108, v108
        v_exp_f32 v110, v110
        v_exp_f32 v112, v112
        v_exp_f32 v114, v114
        v_mul_f32 v29, v108, v109
        v_fmac_f32 v29, v110, v111
        v_fmac_f32 v29, v112, v113
        v_fmac_f32 v29, v114, v115
        v_rcp_f32 v29, v29
        s_waitcnt lgkmcnt(0)
        """)
        for e in range(4):
            I(f"v_mul_f32 v{132+e}, v108, v{116+e}")
        for w in range(1, 4):
            for e in range(4):
                I(f"v_fmac_f32 v{132+e}, v{108+2*w}, v{116+4*w+e}")
        I(f"""
        v_mul_f32 v132, v132, v29
        v_mul_f32 v133, v133, v29
        v_mul_f32 v134, v134, v29
        v_mul_f32 v135, v135, v29
        v_cvt_pk_bf16_f32 v140, v132, v133
        v_cvt_pk_bf16_f32 v142, v134, v135
        s_mov_b32 exec_hi, 0
        buffer_store_dwordx4 v[140:143], v38, s[16:19], 0 offen {self.stO}
        s_mov_b64 exec, -1
        """)
        self.stamp(7)
        A("L_x2:")
        I("s_mov_b32 s71, 0")
        A("L_x2loop:")
        I(f"""
        buffer_load_dwordx4 v[108:111], v22, s[16:19], 0 offen {self.ldO}
        s_waitcnt vmcnt(0)
        v_xor_b32 v28, s6, v109
        v_xor_b32 v29, s6, v111
        v_or_b32 v28, v28, v29
        v_cmp_ne_u32 vcc, 0, v28
        s_add_u32 s71, s71, 1
        s_cbranch_vccz L_x2done
        s_mov_b64 exec, vcc
        """)
        if self.x2sleep:
            I(f"s_sleep {self.x2sleep}")
        I(f"""
        s_cmp_lt_u32 s71, {SPIN_MAX}
        s_cbranch_scc1 L_x2loop
        L_x2done:
        s_mov_b64 exec, 1
        ds_write2_b32 v25, v108, v110 offset0:0 offset1:1
        """)
        self.L.pop(); self.L.pop()
        I("""
        s_mov_b64 exec, -1
        ds_write2_b32 v25, v108, v110 offset0:0 offset1:1
        s_mov_b64 exec, 1
        ds_add_u32 v40, v41 offset:44
        s_mov_b64 exec, -1
        """)
        self.lds_spin(44, 4, 28, sleep=0)
        self.stamp(8)
        for s in range(4):
            I(f"ds_read_b128 v[{108+4*s}:{111+4*s}], v26 offset:{64*s}")
        for s in range(4):
            I(f"s_waitcnt lgkmcnt({3-s})")
            I(f"v_mfma_f32_16x16x32_bf16 v[12:15], v[{108+4*s}:{111+4*s}], v[{44+4*s}:{47+4*s}], v[12:15]")
            I(f"v_mfma_f32_16x16x32_bf16 v[16:19], v[{108+4*s}:{111+4*s}], v[{60+4*s}:{63+4*s}], v[16:19]")
        I(f"""
        s_nop 7
        v_cndmask_b32 v144, v12, v16, s[82:83]
        v_cndmask_b32 v145, v13, v17, s[82:83]
        v_cndmask_b32 v146, v14, v18, s[82:83]
        v_cndmask_b32 v147, v15, v19, s[82:83]
        v_add_u32 v144, 0x80, v144
        v_add_u32 v145, 0x80, v145
        v_add_u32 v146, 0x80, v146
        v_add_u32 v147, 0x80, v147
        v_and_or_b32 v144, v144, v33, s79
        v_and_or_b32 v145, v145, v33, s79
        v_and_or_b32 v146, v146, v33, s79
        v_and_or_b32 v147, v147, v33, s79
        buffer_store_dwordx4 v[144:147], v27, s[16:19], 0 offen {self.st3}
        """)
        self.stamp(9)
        I("""
        s_cmp_lg_u32 s3, 4
        s_cbranch_scc1 L_end
        """)
        self.poll4("L_x3", 39, 44, sleep=self.x3sleep, flags=self.ld3)
        I("s_nop 0")
        for e in range(4):
            I(f"v_add_f32_dpp v{44+e}, v{44+e}, v{44+e} row_ror:8 row_mask:0xf bank_mask:0xf")
        for sw in ('v_permlane16_swap_b32', 'v_permlane32_swap_b32'):
            for e in range(4):
                I(f"v_mov_b32 v{48+e}, v{44+e}")
            for e in range(4):
                I(f"{sw} v{44+e}, v{48+e}")
            for e in range(4):
                I(f"v_add_f32 v{44+e}, v{44+e}, v{48+e}")
        for e in range(4):
            I(f"v_lshlrev_b32 v{156+e}, 16, v{156+e}")
        for e in range(4):
            I(f"v_add_f32 v{44+e}, v{44+e}, v{156+e}")
        I(f"""
        v_cvt_pk_bf16_f32 v44, v44, v45
        v_cvt_pk_bf16_f32 v46, v46, v47
        v_lshrrev_b32 v45, 16, v44
        v_lshrrev_b32 v47, 16, v46
        s_mov_b64 exec, 0xff
        buffer_store_short v44, v43, s[28:31], 0 offen {self.outsc}
        buffer_store_short v45, v43, s[28:31], 0 offen offset:2048 {self.outsc}
        buffer_store_short v46, v42, s[28:31], 0 offen {self.outsc}
        buffer_store_short v47, v42, s[28:31], 0 offen offset:2048 {self.outsc}
        s_mov_b64 exec, -1
        """)
        self.stamp(10)
        I("""
        s_cmp_lg_u32 s2, 0
        s_cbranch_scc1 L_end
        v_mov_b32 v30, s6
        s_mov_b64 exec, 1
        buffer_store_dword v30, off, s[16:19], 0 sc1
        s_branch L_end
        """)
        A("L_poller:")
        I(f"""
        s_lshl_b32 s64, s5, 3
        s_add_u32 s68, s64, s4
        s_lshl_b32 s65, s68, 13
        s_add_u32 s65, s65, {WS_X1Q}
        v_lshlrev_b32 v20, 4, v1
        v_add_u32 v20, s65, v20
        v_add_u32 v21, 0x1000, v20
        v_lshlrev_b32 v22, 2, v1
        v_add_u32 v22, {QV}, v22
        s_getreg_b32 s52, hwreg(HW_REG_XCC_ID, 0, 4)
        s_lshl_b32 s52, s52, 10
        s_add_u32 s52, s52, {WS_PRG}
        v_lshlrev_b32 v80, 4, v1
        v_add_u32 v80, s52, v80
        s_lshl_b32 s54, s2, 2
        s_add_u32 s54, s54, s52
        v_mov_b32 v81, s54
        s_barrier
        """)
        if self.pwarm & 4:
            I(f"""
            v_lshlrev_b32 v26, 7, v1
            v_add_u32 v26, s65, v26
            buffer_load_dword v25, v26, s[16:19], 0 offen sc1
            """)
        if self.pwarm & 2:
            I(f"""
            s_lshl_b32 s64, s73, 12
            s_add_u32 s64, s64, {WS_X3}
            v_and_b32 v27, 31, v1
            v_lshlrev_b32 v27, 7, v27
            v_add_u32 v27, s64, v27
            s_mov_b32 exec_hi, 0
            buffer_load_dword v27, v27, s[16:19], 0 offen sc1
            s_mov_b64 exec, -1
            """)
        if self.pwarm & 1:
            I(f"""
            buffer_load_dwordx4 v[52:55], v80, s[16:19], 0 offen sc1
            s_lshl_b32 s64, s68, 9
            s_add_u32 s64, s64, {WS_X2O}
            v_and_b32 v24, 3, v1
            v_lshlrev_b32 v24, 7, v24
            v_add_u32 v24, s64, v24
            s_mov_b64 exec, 15
            buffer_load_dword v26, v24, s[16:19], 0 offen sc1
            s_mov_b64 exec, -1
            """)
        I(f"""
        s_waitcnt vmcnt(0)
        v_readfirstlane_b32 s6, v5
        s_nop 3
        s_add_u32 s6, s6, 1
        s_and_b32 s79, s6, 0xff
        s_lshl_b32 s55, s6, 8
        """)
        self.lds_spin(4, 8, 24, sleep=1)
        self.stamp(2)
        if self.light:
            I(f"""
            v_lshlrev_b32 v23, 10, v1
            v_add_u32 v23, s65, v23
            s_mov_b32 s71, 0
            s_mov_b64 exec, 0xff
            L_lq:
            buffer_load_dwordx2 v[44:45], v23, s[16:19], 0 offen offset:896 {self.ldQ}
            s_waitcnt vmcnt(0)
            v_cmp_ne_u32 vcc, s6, v45
            s_add_u32 s71, s71, 1
            s_cbranch_vccz L_lq_done
            s_cmp_lt_u32 s71, {SPIN_MAX}
            s_cbranch_scc1 L_lq
            L_lq_done:
            s_mov_b64 exec, -1
            """)
        I(f"""
        s_lshl_b32 s65, s68, 12
        s_add_u32 s65, s65, {WS_X1H}
        v_lshlrev_b32 v62, 4, v1
        v_add_u32 v62, s65, v62
        v_and_b32 v63, 31, v1
        v_lshlrev_b32 v63, 4, v63
        s_mov_b32 s71, 0
        L_pq_loop:
        """)
        for i in range(8):
            I(f"buffer_load_dwordx4 v[{84+4*i}:{87+4*i}], v{20 if i < 4 else 21}, s[16:19], 0 offen offset:{(i & 3)*1024} {self.ldQ}")
        if self.hearly:
            for i in range(4):
                I(f"buffer_load_dwordx4 v[{44+4*i}:{47+4*i}], v62, s[16:19], 0 offen offset:{i*1024} {self.hflags}")
        I("s_waitcnt vmcnt(0)")
        self.tagcheck(84, 8, 30, 31, 32)
        I(f"""
        v_cmp_ne_u32 vcc, 0, v30
        s_add_u32 s71, s71, 1
        s_cbranch_vccz L_pq_done
        s_cmp_lt_u32 s71, {SPIN_MAX}
        s_cbranch_scc1 L_pq_loop
        L_pq_done:
        """)
        for i in range(1, 8):
            I(f"v_add_f32 v84, v84, v{84+4*i}")
            I(f"v_add_f32 v86, v86, v{86+4*i}")
        I("""
        v_cvt_pk_bf16_f32 v84, v84, v86
        ds_write_b32 v22, v84
        s_mov_b64 exec, 1
        ds_write_b32 v40, v41 offset:8
        s_mov_b64 exec, -1
        s_waitcnt lgkmcnt(0)
        """)
        self.stamp(3)
        I("""
        s_mov_b32 s75, 0
        s_mov_b32 s70, 0
        v_mov_b32 v26, 0
        """)
        if self.hearly:
            self.tagcheck4(44, 4, 30, 31, 32)
            I("""
            v_cmp_ne_u32 vcc, 0, v30
            s_cbranch_vccz L_hfin
            """)
        I(f"""
        L_mon:
        ds_read_b128 v[44:47], v40 offset:16
        s_waitcnt lgkmcnt(0)
        v_min_u32 v26, v44, v45
        v_min_u32 v27, v46, v47
        v_min_u32 v26, v26, v27
        v_lshrrev_b32 v26, 1, v26
        s_cmp_lg_u32 s75, 0
        s_cbranch_scc1 L_mon_go
        v_cmp_gt_u32 vcc, {self.hat}, v26
        s_cbranch_vccnz L_mon_go
        s_mov_b32 s71, 0
        L_ph_loop:
        """)
        for i in range(4):
            if 'nold' not in self.hdbg:
                I(f"buffer_load_dwordx4 v[{44+4*i}:{47+4*i}], v62, s[16:19], 0 offen offset:{i*1024} {self.hflags}")
        I("s_waitcnt vmcnt(0)")
        self.tagcheck4(44, 4, 30, 31, 32)
        if 'nold' in self.hdbg:
            I("v_mov_b32 v30, 0")
        I(f"""
        v_cmp_ne_u32 vcc, 0, v30
        s_add_u32 s71, s71, 1
        s_cbranch_vccz L_hfin
        s_sleep {self.sleep_h}
        s_cmp_lt_u32 s71, {SPIN_MAX}
        s_cbranch_scc1 L_ph_loop
        L_hfin:
        s_mov_b32 s75, 1
        """)
        for e in range(16):
            I(f"v_and_b32 v{44+e}, 0xffffff00, v{44+e}")
        for e in range(4):
            I(f"v_add_f32 v{44+e}, v{44+e}, v{48+e}")
            I(f"v_add_f32 v{52+e}, v{52+e}, v{56+e}")
        for e in range(4):
            I(f"v_add_f32 v{44+e}, v{44+e}, v{52+e}")
        I("s_nop 0")
        self.half_reduce4(44, 48)
        I(f"""
        v_max_f32 v44, 0, v44
        v_max_f32 v45, 0, v45
        v_max_f32 v46, 0, v46
        v_max_f32 v47, 0, v47
        v_cvt_pk_bf16_f32 v44, v44, v45
        v_mov_b32 v45, s6
        v_cvt_pk_bf16_f32 v46, v46, v47
        v_mov_b32 v47, s6
        s_lshl_b32 s65, s68, 9
        s_add_u32 s65, s65, {WS_X2H}
        v_add_u32 v22, s65, v63
        s_mov_b32 exec_hi, 0
        buffer_store_dwordx4 v[44:47], v22, s[16:19], 0 offen {self.stX2H}
        s_mov_b64 exec, -1
        """)
        self.stamp(4)
        GLD = ""
        PRGST = "s_nop 0" if self.noprg else f"buffer_store_dword v30, v81, s[16:19], 0 offen {self.prgst}"
        I(f"""
        L_mon_go:
        v_cmp_le_u32 vcc, {256 - self.MEXIT}, v26
        v_min_u32 v26, 255, v26
        v_or_b32 v30, s55, v26
        s_mov_b64 exec, 1
        {PRGST}
        s_mov_b64 exec, -1
        s_cbranch_vccnz L_mon_exit
        buffer_load_dwordx4 v[52:55], v80, s[16:19], 0 offen sc1
        {GLD}
        s_waitcnt vmcnt(0)
        v_mov_b32 v28, 0
        v_mov_b32 v29, 0
        """)
        for e in range(4):
            I(f"""
            v_xor_b32 v27, s55, v{52+e}
            v_cmp_gt_u32 vcc, 256, v27
            s_nop 1
            v_cndmask_b32 v27, 0, v27, vcc
            v_add_u32 v28, v28, v27
            v_addc_co_u32 v29, vcc, 0, v29, vcc
            """)
        I("v_lshl_add_u32 v28, v29, 16, v28")
        self.wave_allreduce(28, 29, 'v_add_u32')
        I("""
        v_lshrrev_b32 v29, 16, v28
        v_and_b32 v28, 0xffff, v28
        """)
        if self.gctl:
            I(f"""
            v_cvt_f32_u32 v62, v28
            v_cvt_f32_u32 v63, v29
            v_rcp_f32 v63, v63
            s_nop 0
            v_mul_f32 v62, v62, v63
            v_mul_f32 v62, 8.0, v62
            v_cvt_u32_f32 v62, v62
            v_min_u32 v62, 0x7ff, v62
            s_cmp_ge_u32 s2, 8
            s_cbranch_scc1 L_mon_nopub
            v_or_b32 v63, s56, v62
            s_mov_b64 exec, 1
            buffer_store_dword v63, v83, s[16:19], 0 offen {self.gst}
            s_mov_b64 exec, -1
            L_mon_nopub:
            v_lshrrev_b32 v64, 15, v60
            v_cmp_eq_u32 vcc, s57, v64
            v_and_b32 v65, 0x7ff, v60
            v_bfe_u32 v66, v60, 11, 4
            v_cndmask_b32 v65, 0, v65, vcc
            v_cndmask_b32 v67, 0, 1, vcc
            v_cndmask_b32 v66, -1, v66, vcc
            v_cmp_eq_u32 vcc, s58, v66
            v_lshl_add_u32 v67, v67, 16, v65
            s_nop 0
            v_cndmask_b32 v68, 0, v65, vcc
            s_nop 1
            v_add_u32_dpp v67, v67, v67 row_ror:4 row_mask:0xf bank_mask:0xf
            v_max_u32_dpp v68, v68, v68 row_ror:4 row_mask:0xf bank_mask:0xf
            s_nop 0
            v_add_u32_dpp v67, v67, v67 row_ror:2 row_mask:0xf bank_mask:0xf
            v_max_u32_dpp v68, v68, v68 row_ror:2 row_mask:0xf bank_mask:0xf
            s_nop 0
            v_add_u32_dpp v67, v67, v67 row_ror:1 row_mask:0xf bank_mask:0xf
            v_max_u32_dpp v68, v68, v68 row_ror:1 row_mask:0xf bank_mask:0xf
            v_lshrrev_b32 v69, 16, v67
            v_and_b32 v67, 0xffff, v67
            v_cvt_f32_u32 v69, v69
            v_cvt_f32_u32 v67, v67
            v_max_f32 v69, 1.0, v69
            v_rcp_f32 v69, v69
            s_nop 0
            v_mul_f32 v67, v67, v69
            v_cvt_u32_f32 v67, v67
            v_sub_u32 v69, v68, v67
            v_cmp_lt_u32 vcc, 0, v68
            s_nop 1
            v_cndmask_b32 v69, 0, v69, vcc
            v_mul_i32_i24 v69, {self.GG}, v69
            v_lshlrev_b32 v27, 3, v26
            v_sub_u32 v27, v27, v62
            v_add_u32 v27, v27, v69
            v_cmp_lt_i32 vcc, {self.TH * 8}, v27
            s_nop 1
            v_cndmask_b32 v29, 0, 1, vcc
            """)
        else:
            I(f"""
            v_subrev_u32 v27, {self.TH}, v26
            v_max_i32 v27, 0, v27
            v_mul_u32_u24 v27, v27, v29
            v_cmp_gt_u32 vcc, v27, v28
            s_nop 1
            v_cndmask_b32 v29, 0, 1, vcc
            """)
        I(f"""
        ds_write_b32 v40, v29 offset:48
        s_sleep {self.msleep}
        s_add_u32 s70, s70, 1
        s_cmp_lt_u32 s70, {SPIN_MAX}
        s_cbranch_scc1 L_mon
        L_mon_exit:
        v_mov_b32 v29, 0
        ds_write_b32 v40, v29 offset:48
        s_waitcnt lgkmcnt(0)
        s_branch L_end
        """)
        A("L_loader:")
        I(f"""
        s_min_u32 s66, s5, 27
        s_mul_i32 s64, s4, {128*7168}
        s_lshl_b32 s65, s66, 8
        s_add_u32 s64, s64, s65
        s_add_u32 s52, s44, s64
        s_addc_u32 s53, s45, 0
        s_and_b32 s53, s53, 0xffff
        s_cmp_lt_u32 s5, 28
        s_cselect_b32 s54, {127*7168+256}, 0
        s_mov_b32 s55, 0x20000
        s_lshl_b32 s64, s5, 18
        s_lshl_b32 s65, s4, 8
        s_add_u32 s64, s64, s65
        s_add_u32 s56, s40, s64
        s_addc_u32 s57, s41, 0
        s_and_b32 s57, s57, 0xffff
        s_mov_b32 s58, {127*2048+256}
        s_mov_b32 s59, 0x20000
        s_lshl_b32 s64, s66, 18
        s_add_u32 s64, s64, s65
        s_add_u32 s60, s46, s64
        s_addc_u32 s61, s47, 0
        s_and_b32 s61, s61, 0xffff
        s_cmp_lt_u32 s5, 28
        s_cselect_b32 s62, {127*2048+256}, 0
        s_mov_b32 s63, 0x20000
        v_mul_u32_u24 v10, 7168, v2
        v_add_u32 v11, v10, v9
        v_add_u32 v10, v10, v8
        v_lshlrev_b32 v12, 11, v2
        v_add_u32 v13, v12, v9
        v_add_u32 v12, v12, v8
        s_barrier
        s_waitcnt vmcnt(0)
        v_readfirstlane_b32 s6, v5
        s_nop 3
        s_add_u32 s6, s6, 1
        s_and_b32 s79, s6, 0xff
        """)
        if self.lstart == 'A':
            self.lds_spin(0, 8, 24, sleep=1)

        def tile_loop(lab, srd, stride, ldsb, va, vb, throttle):
            I(f"""
            s_mov_b32 s64, 0
            s_mov_b32 s65, {ldsb}
            """)
            A(f"{lab}:")
            for i in range(4):
                I(f"""
                s_mov_b32 m0, s65
                s_add_u32 s65, s65, 1024
                buffer_load_dwordx4 v{va if i < 2 else vb}, s[{srd}:{srd+3}], s64 offen {self.wflags} lds
                s_add_u32 s64, s64, {4*stride}
                s_waitcnt vmcnt({min(throttle, 48) - 1})
                """)
            I(f"""
            s_cmp_lt_u32 s65, {ldsb + 32768}
            s_cbranch_scc1 {lab}
            """)
        tile_loop("L_t_w1", 52, 7168, T_W1, 10, 11, self.T[0])
        tile_loop("L_t_wo", 56, 2048, T_WO, 12, 13, self.T[1])
        I("s_waitcnt vmcnt(32)")
        self.lds_inc(56)
        tile_loop("L_t_w2", 60, 2048, T_W2, 12, 13, self.T[2])
        self.lds_inc(52)
        self.stamp(2)
        I("s_waitcnt vmcnt(0)")
        self.lds_inc(32)
        I("s_waitcnt lgkmcnt(0)")
        self.stamp(6)
        A("L_end:")
        self.stampflush()
        A("L_exit:")
        A("  s_endpgm")
        A('.section .rodata,"a"')
        A(".p2align 6")
        A(f".amdhsa_kernel {KNAME}")
        A("  .amdhsa_next_free_vgpr 168")
        A("  .amdhsa_next_free_sgpr 96")
        A("  .amdhsa_accum_offset 168")
        A("  .amdhsa_group_segment_fixed_size 0")
        A("  .amdhsa_kernarg_size 88")
        A("  .amdhsa_user_sgpr_count 2")
        A("  .amdhsa_user_sgpr_kernarg_segment_ptr 1")
        A("  .amdhsa_system_sgpr_workgroup_id_x 1")
        A("  .amdhsa_float_denorm_mode_32 3")
        A(".end_amdhsa_kernel")
        return '\n'.join(self.L) + '\n'


if __name__ == '__main__':
    for spec in sys.argv[1:]:
        name, _, rest = spec.partition(':')
        kw = {}
        if rest:
            for a in rest.split(','):
                k, v = a.split('=')
                kw[k] = v.replace('+', ' ')
        open(name, 'w').write(Gen(**kw).gen())
```

```python
import sys

KNAME = 'parallel_sum__mha_block_cached__dense_activation_relu__decode_kernel'

HEADER_COMMENTS = """; Kernarg layout for this problem (88 bytes, ptrs only, base s[0:1]):
"""

WS_X1Q = 0x100000
WS_X1H = 0x300000
WS_X2O = 0x500000
WS_X2H = 0x520000
WS_PRG = 0x580000
WS_GP = 0x590000
WS_X3 = 0x600000
WS_TS = 0x800000
WS_SIZE = 0xA00000

T_WQ, T_W1, T_WO, T_W2 = 0, 32768, 65536, 98304
XN = 131072
XN_RS = 272
QV = XN + 8 * XN_RS
OBUF = QV + 256
MLB = OBUF + 4096
A2 = MLB + 64
A2_RS = 272
FL = A2 + 8 * 528
LDS_ALLOC = 143360
SPIN_MAX = 400000
Ws = 4


class Gen:
    def __init__(self, ts=False, kvflags='nt', wflags='nt', R=8, T1=32, T2=32, T3=32, sleep_h=16, map='mix',
                 lstart='0', light=1, pretouch=0, ctl=1, TH=-1, KD=3, msleep=12, MEXIT=10, tlb=0, x2sleep=1, x3sleep=1,
                 hsleep=64, outsc='', levels='', NB=1, pre=1, warm=0, trace=0, hat=32, tat=96, pwarm=1, hflags='sc1 nt', thflags='sc1 nt', nohjob=0, stH='sc1 nt', stX2H='sc1 nt', stQ='sc1', ldQ='sc1', stO='sc1', ldO='sc1', st3='sc1', ld3='sc1', stout='', prgst='', noprg=0, gctl=0, GG=1, gst='sc1 nt', gld='sc1 nt', vflags=None, hearly=0, hdbg=''):
        self.hdbg = hdbg
        self.hearly = int(hearly)
        self.vflags = vflags
        self.gctl = int(gctl); self.GG = int(GG); self.gst = gst; self.gld = gld
        self.prgst = prgst; self.noprg = int(noprg)
        self.ldQ = ldQ; self.stO = stO; self.ldO = ldO; self.st3 = st3; self.ld3 = ld3
        self.stH = stH; self.stX2H = stX2H; self.stQ = stQ
        self.hflags = hflags; self.thflags = thflags; self.nohjob = int(nohjob)
        self.hat = int(hat); self.tat = int(tat); self.pwarm = int(pwarm)
        self.trace = int(trace)
        self.warm = int(warm)
        self.pre = int(pre)
        self.NB = int(NB)
        self.levels = [int(x) for x in str(levels).split('/')] if levels else []
        self.L = []
        self.ts = ts in (True, '1', 1)
        self.kvflags = kvflags; self.wflags = wflags
        self.R = int(R); self.T = (int(T1), int(T2), int(T3))
        self.sleep_h = int(sleep_h); self.map = map; self.lstart = lstart; self.light = int(light)
        self.pretouch = int(pretouch); self.ctl = int(ctl); self.TH = int(TH); self.KD = int(KD)
        self.msleep = int(msleep); self.MEXIT = int(MEXIT); self.tlb = int(tlb)
        self.x2sleep = int(x2sleep); self.x3sleep = int(x3sleep); self.hsleep = int(hsleep); self.outsc = outsc
        self.nlab = 0

    def A(self, s):
        self.L.append(s)

    def I(self, s):
        for line in s.strip('\n').split('\n'):
            line = line.strip()
            if line:
                self.L.append(line if line.endswith(':') else '  ' + line)

    def stamp(self, idx):
        if self.ts:
            self.I(f"""
            s_memrealtime s[76:77]
            s_waitcnt lgkmcnt(0)
            s_mov_b32 s{84+idx}, s76
            """)

    def stampflush(self):
        if not self.ts:
            return
        self.I("s_mov_b64 exec, -1")
        for i in range(12):
            self.I(f"v_writelane_b32 v166, s{84+i}, {i}")
        self.I("""
        v_lshlrev_b32 v167, 2, v1
        v_add_u32 v167, s78, v167
        s_mov_b64 exec, 0xfff
        buffer_store_dword v166, v167, s[16:19], 0 offen
        s_mov_b64 exec, -1
        """)

    def row_allreduce(self, v, t, op='v_add_f32'):
        self.I(f"""
        v_mov_b32 v{t}, v{v}
        s_nop 1
        v_permlane16_swap_b32 v{v}, v{t}
        {op} v{v}, v{v}, v{t}
        v_mov_b32 v{t}, v{v}
        s_nop 1
        v_permlane32_swap_b32 v{v}, v{t}
        {op} v{v}, v{v}, v{t}
        """)

    def row_allreduce2(self, v0, t0, v1, t1, op='v_add_f32'):
        for sw in ('v_permlane16_swap_b32', 'v_permlane32_swap_b32'):
            self.I(f"""
            v_mov_b32 v{t0}, v{v0}
            v_mov_b32 v{t1}, v{v1}
            s_nop 0
            {sw} v{v0}, v{t0}
            {sw} v{v1}, v{t1}
            {op} v{v0}, v{v0}, v{t0}
            {op} v{v1}, v{v1}, v{t1}
            """)

    def wave_allreduce(self, v, t, op='v_add_f32'):
        for ror in (8, 4, 2, 1):
            self.I("s_nop 1")
            self.I(f"{op}_dpp v{v}, v{v}, v{v} row_ror:{ror} row_mask:0xf bank_mask:0xf")
        self.row_allreduce(v, t, op)

    def lds_spin(self, off, val, vtmp, sleep=1, ge=False):
        n = self.nlab; self.nlab += 1
        cmp = f"v_cmp_gt_u32 vcc, {val}, v{vtmp}" if ge else f"v_cmp_ne_u32 vcc, {val}, v{vtmp}"
        self.I(f"""
        s_mov_b32 s71, 0
        L_sp{n}:
        ds_read_b32 v{vtmp}, v40 offset:{off}
        s_add_u32 s71, s71, 1
        s_waitcnt lgkmcnt(0)
        {cmp}
        s_cbranch_vccz L_sp{n}_done
        """)
        if sleep:
            self.I(f"s_sleep {sleep}")
        self.I(f"""
        s_cmp_lt_u32 s71, {SPIN_MAX*4}
        s_cbranch_scc1 L_sp{n}
        L_sp{n}_done:
        """)

    def lds_inc(self, off):
        self.I(f"""
        s_mov_b64 exec, 1
        ds_add_u32 v40, v41 offset:{off}
        s_mov_b64 exec, -1
        """)

    def tagcheck(self, dst, n, acc, t0, t1):
        I = self.I
        I(f"v_xor_b32 v{acc}, s6, v{dst+1}")
        I(f"v_xor_b32 v{t0}, s6, v{dst+3}")
        I(f"v_or_b32 v{acc}, v{acc}, v{t0}")
        for i in range(1, n):
            I(f"""
            v_xor_b32 v{t0}, s6, v{dst+1+4*i}
            v_xor_b32 v{t1}, s6, v{dst+3+4*i}
            v_or3_b32 v{acc}, v{acc}, v{t0}, v{t1}
            """)

    def poll8(self, lab, base0, base1, dst, sleep=0, masked=False, flags='sc1'):
        I, A = self.I, self.A
        I("s_mov_b32 s71, 0")
        A(f"{lab}_loop:")
        for i in range(8):
            I(f"buffer_load_dwordx4 v[{dst+4*i}:{dst+4*i+3}], v{base0 if i < 4 else base1}, s[16:19], 0 offen offset:{(i & 3)*1024} {flags}")
        I("s_waitcnt vmcnt(0)")
        self.tagcheck(dst, 8, 30, 31, 32)
        I(f"""
        v_cmp_ne_u32 vcc, 0, v30
        s_add_u32 s71, s71, 1
        s_cbranch_vccz {lab}_done
        """)
        if masked:
            I("s_mov_b64 exec, vcc")
        if sleep:
            I(f"s_sleep {sleep}")
        I(f"""
        s_cmp_lt_u32 s71, {SPIN_MAX}
        s_cbranch_scc1 {lab}_loop
        """)
        A(f"{lab}_done:")
        if masked:
            I("s_mov_b64 exec, -1")
        for i in range(1, 8):
            I(f"v_add_f32 v{dst}, v{dst}, v{dst+4*i}")
            I(f"v_add_f32 v{dst+2}, v{dst+2}, v{dst+2+4*i}")

    def x1q_addr(self, dst, base_const, ntile_shift7_sgpr):
        self.I(f"""
        v_and_b32 v28, 1, v2
        v_lshlrev_b32 v28, 2, v28
        v_lshrrev_b32 v29, 1, v2
        v_lshlrev_b32 v29, 1, v29
        v_add_u32 v28, v28, v29
        v_and_b32 v29, 1, v3
        v_add_u32 v28, v28, v29
        v_lshlrev_b32 v28, 13, v28
        s_lshl_b32 s64, s5, 16
        s_lshl_b32 s65, s4, 10
        s_add_u32 s64, s64, s65
        """)
        if ntile_shift7_sgpr:
            self.I(f"""
            s_lshl_b32 s65, {ntile_shift7_sgpr}, 7
            s_add_u32 s64, s64, s65
            """)
        self.I(f"""
        s_add_u32 s64, s64, {base_const}
        v_and_b32 v29, 14, v3
        v_lshlrev_b32 v29, 3, v29
        v_add_u32 v28, v28, v29
        v_add_u32 v{dst}, s64, v28
        v_and_b32 v29, 1, v3
        v_cmp_eq_u32 s[80:81], 1, v29
        """)

    def x1q_store(self, D, vaddr):
        self.I(f"""
        v_cndmask_b32 v24, v{D}, v{D+2}, vcc
        v_cndmask_b32 v25, v{D+1}, v{D+3}, vcc
        s_nop 1
        v_mov_b32_dpp v26, v24 quad_perm:[1,0,3,2] row_mask:0xf bank_mask:0xf
        v_mov_b32_dpp v27, v25 quad_perm:[1,0,3,2] row_mask:0xf bank_mask:0xf
        s_nop 0
        v_cndmask_b32 v32, v24, v27, s[80:81]
        v_cndmask_b32 v34, v26, v25, s[80:81]
        buffer_store_dwordx4 v[32:35], v{vaddr}, s[16:19], 0 offen {self.stQ}
        """)

    def tagcheck4(self, dst, n, acc, t0, t1):
        I = self.I
        I(f"v_xor_b32 v{acc}, s79, v{dst}")
        I(f"v_xor_b32 v{t0}, s79, v{dst+1}")
        I(f"v_or_b32 v{acc}, v{acc}, v{t0}")
        for i in range(2, 4 * n, 2):
            I(f"""
            v_xor_b32 v{t0}, s79, v{dst+i}
            v_xor_b32 v{t1}, s79, v{dst+i+1}
            v_or3_b32 v{acc}, v{acc}, v{t0}, v{t1}
            """)
        I(f"v_and_b32 v{acc}, 0xff, v{acc}")

    def poll4(self, lab, base, dst, sleep=0, flags='sc1'):
        I, A = self.I, self.A
        I("s_mov_b32 s71, 0")
        A(f"{lab}_loop:")
        for i in range(4):
            I(f"buffer_load_dwordx4 v[{dst+4*i}:{dst+4*i+3}], v{base}, s[16:19], 0 offen offset:{i*1024} {flags}")
        I("s_waitcnt vmcnt(0)")
        self.tagcheck4(dst, 4, 30, 31, 32)
        I(f"""
        v_cmp_ne_u32 vcc, 0, v30
        s_add_u32 s71, s71, 1
        s_cbranch_vccz {lab}_done
        """)
        if sleep:
            I(f"s_sleep {sleep}")
        I(f"""
        s_cmp_lt_u32 s71, {SPIN_MAX}
        s_cbranch_scc1 {lab}_loop
        """)
        A(f"{lab}_done:")
        for e in range(16):
            I(f"v_and_b32 v{dst+e}, 0xffffff00, v{dst+e}")
        for e in range(4):
            I(f"v_add_f32 v{dst+e}, v{dst+e}, v{dst+4+e}")
            I(f"v_add_f32 v{dst+8+e}, v{dst+8+e}, v{dst+12+e}")
        for e in range(4):
            I(f"v_add_f32 v{dst+e}, v{dst+e}, v{dst+8+e}")

    def half_reduce4(self, v, t):
        for e in range(4):
            self.I(f"v_mov_b32 v{t+e}, v{v+e}")
        for e in range(4):
            self.I(f"v_permlane32_swap_b32 v{v+e}, v{t+e}")
        for e in range(4):
            self.I(f"v_add_f32 v{v+e}, v{v+e}, v{t+e}")

    def x1_addr(self, dst, base_const, col_sgpr_expr):
        self.I(f"""
        v_and_b32 v28, 1, v2
        v_lshlrev_b32 v28, 2, v28
        v_and_b32 v29, 3, v3
        v_add_u32 v28, v28, v29
        v_lshlrev_b32 v28, 12, v28
        v_lshrrev_b32 v29, 2, v3
        v_lshlrev_b32 v29, 4, v29
        v_add_u32 v28, v28, v29
        s_lshl_b32 s64, s5, 15
        s_lshl_b32 s65, s4, 9
        s_add_u32 s64, s64, s65
        """)
        if col_sgpr_expr:
            self.I(f"""
            s_lshl_b32 s65, {col_sgpr_expr}, 6
            s_add_u32 s64, s64, s65
            """)
        else:
            self.I("""
            v_lshrrev_b32 v29, 1, v2
            v_lshlrev_b32 v29, 6, v29
            v_add_u32 v28, v28, v29
            """)
        self.I(f"""
        s_add_u32 s64, s64, {base_const}
        v_add_u32 v{dst}, s64, v28
        v_and_b32 v29, 1, v3
        v_cmp_eq_u32 s[80:81], 1, v29
        v_and_b32 v29, 2, v3
        v_cmp_eq_u32 s[82:83], 2, v29
        """)

    def quad_transpose_tag(self, D, t):
        I = self.I
        x1 = "quad_perm:[1,0,3,2] row_mask:0xf bank_mask:0xf"
        x2 = "quad_perm:[2,3,0,1] row_mask:0xf bank_mask:0xf"
        I(f"""
        v_mov_b32_dpp v{t}, v{D+1} {x1}
        v_mov_b32_dpp v{t+1}, v{D} {x1}
        v_mov_b32_dpp v{t+2}, v{D+3} {x1}
        v_mov_b32_dpp v{t+3}, v{D+2} {x1}
        v_cndmask_b32 v{D}, v{D}, v{t}, s[80:81]
        v_cndmask_b32 v{D+1}, v{t+1}, v{D+1}, s[80:81]
        v_cndmask_b32 v{D+2}, v{D+2}, v{t+2}, s[80:81]
        v_cndmask_b32 v{D+3}, v{t+3}, v{D+3}, s[80:81]
        s_nop 0
        v_mov_b32_dpp v{t}, v{D+2} {x2}
        v_mov_b32_dpp v{t+1}, v{D+3} {x2}
        v_mov_b32_dpp v{t+2}, v{D} {x2}
        v_mov_b32_dpp v{t+3}, v{D+1} {x2}
        v_cndmask_b32 v{D}, v{D}, v{t}, s[82:83]
        v_cndmask_b32 v{D+1}, v{D+1}, v{t+1}, s[82:83]
        v_cndmask_b32 v{D+2}, v{t+2}, v{D+2}, s[82:83]
        v_cndmask_b32 v{D+3}, v{t+3}, v{D+3}, s[82:83]
        v_add_u32 v{D}, 0x80, v{D}
        v_add_u32 v{D+1}, 0x80, v{D+1}
        v_add_u32 v{D+2}, 0x80, v{D+2}
        v_add_u32 v{D+3}, 0x80, v{D+3}
        v_and_or_b32 v{D}, v{D}, v33, s79
        v_and_or_b32 v{D+1}, v{D+1}, v33, s79
        v_and_or_b32 v{D+2}, v{D+2}, v33, s79
        v_and_or_b32 v{D+3}, v{D+3}, v33, s79
        """)

    def tr_base(self, dst, ntile_x2, t0):
        self.I(f"""
        v_lshrrev_b32 v{t0}, 2, v3
        v_and_b32 v{t0+1}, 3, v3
        v_lshlrev_b32 v{t0+2}, 3, v2
        v_add_u32 v{t0+2}, v{t0+2}, v{t0}
        v_lshlrev_b32 v{t0+2}, 8, v{t0+2}
        v_lshrrev_b32 v{t0+3}, 1, v{t0+1}
        v_add_u32 v{t0+3}, {ntile_x2}, v{t0+3}
        v_lshlrev_b32 v{t0+4}, 1, v{t0}
        v_and_b32 v{t0+5}, 1, v2
        v_lshlrev_b32 v{t0+5}, 3, v{t0+5}
        v_add_u32 v{t0+4}, v{t0+4}, v{t0+5}
        v_xor_b32 v{t0+3}, v{t0+3}, v{t0+4}
        v_lshlrev_b32 v{t0+3}, 4, v{t0+3}
        v_add_u32 v{t0+2}, v{t0+2}, v{t0+3}
        v_and_b32 v{t0+1}, 1, v{t0+1}
        v_lshlrev_b32 v{t0+1}, 3, v{t0+1}
        v_add_u32 v{dst}, v{t0+2}, v{t0+1}
        """)

    def gen(self):
        A, I = self.A, self.I
        R = self.R
        A(HEADER_COMMENTS.rstrip('\n'))
        A("; ---------------------------------------------------------------------------------------------------------\n; ---------------------------------------------------------------------------------------------------------")
        A(f"; @launch grid=(256,1,1) block=(640,1,1) lds={LDS_ALLOC}")
        A('.amdgcn_target "amdgcn-amd-amdhsa--gfx950"')
        A(".text")
        A(f".globl {KNAME}")
        A(".p2align 8")
        A(f".type {KNAME},@function")
        A(f"{KNAME}:")
        MAP = {'bh': "s_lshr_b32 s4, s2, 5\n        s_and_b32 s5, s2, 31",
               'hb': "s_and_b32 s4, s2, 7\n        s_lshr_b32 s5, s2, 3",
               'mix': "s_lshr_b32 s4, s2, 3\n        s_and_b32 s4, s4, 7\n        s_lshr_b32 s5, s2, 6\n        s_lshl_b32 s5, s5, 3\n        s_and_b32 s7, s2, 7\n        s_add_u32 s5, s5, s7"}[self.map]
        I(f"""
        s_cmp_ge_u32 s2, 256
        s_cbranch_scc1 L_exit
        s_load_dwordx16 s[32:47], s[0:1], 0
        s_load_dwordx2 s[48:49], s[0:1], 64
        s_load_dwordx2 s[50:51], s[0:1], 80
        v_lshrrev_b32 v4, 6, v0
        v_and_b32 v1, 63, v0
        v_readfirstlane_b32 s3, v4
        v_lshrrev_b32 v2, 4, v1
        v_and_b32 v3, 15, v1
        {MAP}
        s_lshl_b32 s73, s4, 5
        s_add_u32 s73, s73, s5
        s_mov_b32 s72, 0x3fb8aa3b
        v_lshlrev_b32 v8, 1, v2
        v_xor_b32 v8, v3, v8
        v_lshlrev_b32 v8, 4, v8
        v_xor_b32 v9, 128, v8
        v_mov_b32 v40, {FL}
        v_mov_b32 v41, 1
        s_waitcnt lgkmcnt(0)
        s_mov_b32 s16, s50
        s_and_b32 s17, s51, 0xffff
        s_mov_b32 s18, {WS_SIZE}
        s_mov_b32 s19, 0x20000
        buffer_load_dword v5, off, s[16:19], 0 sc1
        """)
        if self.ts:
            I(f"""
            s_lshl_b32 s78, s2, 4
            s_add_u32 s78, s78, s3
            s_lshl_b32 s78, s78, 6
            s_add_u32 s78, s78, {WS_TS}
            """)
        self.stamp(0)
        I("""
        s_cmp_eq_u32 s3, 8
        s_cbranch_scc1 L_poller
        s_cmp_eq_u32 s3, 9
        s_cbranch_scc1 L_loader
        """)
        I(f"""
        s_mov_b32 s24, s32
        s_and_b32 s25, s33, 0xffff
        s_mov_b32 s26, 16384
        s_mov_b32 s27, 0x20000
        s_lshl_b32 s7, s3, 11
        v_lshlrev_b32 v6, 4, v1
        v_add_u32 v6, s7, v6
        s_lshl_b32 s64, s4, 8
        s_add_u32 s64, s64, s7
        v_lshlrev_b32 v7, 4, v3
        v_add_u32 v7, s64, v7
        buffer_load_dwordx4 v[108:111], v6, s[24:27], 0 offen
        buffer_load_dwordx4 v[112:115], v6, s[24:27], 0 offen offset:1024
        buffer_load_dwordx4 v[116:119], v7, s[24:27], 0 offen
        s_lshl_b32 s64, s4, 20
        s_lshl_b32 s65, s5, 8
        s_add_u32 s64, s64, s65
        s_add_u32 s20, s38, s64
        s_addc_u32 s21, s39, 0
        s_and_b32 s21, s21, 0xffff
        s_mov_b32 s22, {127*8192+256}
        s_mov_b32 s23, 0x20000
        v_lshlrev_b32 v10, 13, v2
        v_add_u32 v11, v10, v9
        v_add_u32 v10, v10, v8
        s_lshl_b32 s64, s3, 17
        s_lshl_b32 s65, s3, 12
        """)
        for i in range(4):
            I(f"""
            s_mov_b32 m0, s65
            s_add_u32 s65, s65, 1024
            buffer_load_dwordx4 v{10 + ((i >> 1) & 1)}, s[20:23], s64 offen {self.wflags} lds
            s_add_u32 s64, s64, {4*8192}
            """)
        I("""
        s_cmp_lg_u32 s3, 0
        s_cbranch_scc1 L_noinit
        v_mov_b32 v20, 0
        v_mov_b32 v21, 0
        v_mov_b32 v22, 0
        v_mov_b32 v23, 0
        ds_write_b128 v40, v[20:23]
        ds_write_b128 v40, v[20:23] offset:16
        ds_write_b128 v40, v[20:23] offset:32
        ds_write_b128 v40, v[20:23] offset:48
        s_waitcnt lgkmcnt(0)
        L_noinit:
        """)
        I(f"""
        s_lshl_b32 s64, s73, 20
        s_add_u32 s8, s34, s64
        s_addc_u32 s9, s35, 0
        s_and_b32 s9, s9, 0xffff
        s_mov_b32 s10, 0x100000
        s_mov_b32 s11, 0x20000
        s_add_u32 s12, s36, s64
        s_addc_u32 s13, s37, 0
        s_and_b32 s13, s13, 0xffff
        s_mov_b32 s14, 0x100000
        s_mov_b32 s15, 0x20000
        s_mul_i32 s7, s3, {self.NB * 1024}
        v_lshlrev_b32 v19, 4, v1
        v_add_u32 v19, s7, v19
        v_mov_b32 v42, v19
        v_mov_b32 v158, v19
        s_barrier
        s_cmp_ge_u32 s3, {Ws}
        s_cbranch_scc1 L_noring
        """)
        NB = self.NB
        STEP = Ws * NB * 1024
        SLOT = [44 + 4 * NB * i for i in range(R)]

        def ldslot(base, srd, voff, fl=None):
            for i in range(NB):
                I(f"buffer_load_dwordx4 v[{base+4*i}:{base+4*i+3}], v{voff}, s[{srd}:{srd+3}], 0 offen offset:{1024*i} {self.kvflags if fl is None else fl}")
        EXTRA = [44 + 4 * NB * (R + i) for i in range(R)]
        assert NB == 1 and (EXTRA[-1] + 4 <= 108 or not self.pre) and SLOT[-1] + 4 <= 108
        for p in range(R):
            ldslot((EXTRA if self.pre else SLOT)[p], 8, 19)
            I(f"v_add_u32 v19, {STEP}, v19")
        I("v_mov_b32 v42, v19")
        A("L_noring:")
        I(f"""
        s_mul_i32 s7, s3, {XN_RS}
        s_add_u32 s7, s7, {XN}
        v_lshlrev_b32 v36, 4, v3
        v_add_u32 v36, s7, v36
        s_lshl_b32 s7, s3, 1
        """)
        self.tr_base(164, 's7', 28)
        I(f"""
        v_and_b32 v37, 7, v3
        v_mul_u32_u24 v37, {XN_RS}, v37
        v_lshlrev_b32 v38, 4, v2
        v_add_u32 v37, v37, v38
        v_add_u32 v37, {XN}, v37
        """)
        self.x1q_addr(39, WS_X1Q, 's3')
        I(f"""
        v_mov_b32 v21, 0xffff
        v_mov_b32 v22, 0xffff0000
        v_lshrrev_b32 v23, 1, v3
        v_cndmask_b32 v21, v21, v22, s[80:81]
        """)
        for j in range(4):
            I(f"""
            v_cmp_eq_u32 vcc, {j}, v23
            s_nop 1
            v_cndmask_b32 v{8+j}, 0, v21, vcc
            """)
        I(f"""
        v_mov_b32 v12, 0
        v_mov_b32 v13, 0
        v_mov_b32 v14, 0
        v_mov_b32 v15, 0
        v_mov_b32 v16, 0xff800000
        v_mov_b32 v17, 0xff800000
        v_mov_b32 v18, 0
        v_lshlrev_b32 v38, 4, v3
        v_add_u32 v38, {QV}, v38
        s_lshl_b32 s7, s3, 3
        s_add_u32 s7, s7, {MLB}
        v_mov_b32 v165, s7
        s_lshl_b32 s7, s3, 9
        s_add_u32 s7, s7, {OBUF}
        v_lshlrev_b32 v163, 5, v3
        v_lshlrev_b32 v28, 4, v2
        v_add_u32 v163, v163, v28
        v_add_u32 v163, s7, v163
        """)
        I(f"""
        s_cmp_ge_u32 s3, {Ws}
        s_cbranch_scc1 L_wx_t
        s_waitcnt vmcnt({4 + R*NB})
        s_branch L_wx_done
        L_wx_t:
        s_waitcnt vmcnt(4)
        L_wx_done:
        """)
        self.stamp(1)
        I("v_readfirstlane_b32 s6, v5")
        f = 132
        for e in range(8):
            I(f"""
            v_lshlrev_b32 v{f+2*e}, 16, v{108+e}
            v_and_b32 v{f+1+2*e}, 0xffff0000, v{108+e}
            """)
        I("s_add_u32 s6, s6, 1")
        I("s_and_b32 s79, s6, 0xff")
        I(f"""
        v_add_f32 v28, v{f}, v{f+1}
        v_add_f32 v29, v{f+2}, v{f+3}
        v_add_f32 v30, v{f+4}, v{f+5}
        v_add_f32 v31, v{f+6}, v{f+7}
        v_add_f32 v32, v{f+8}, v{f+9}
        v_add_f32 v33, v{f+10}, v{f+11}
        v_add_f32 v34, v{f+12}, v{f+13}
        v_add_f32 v35, v{f+14}, v{f+15}
        v_add_f32 v28, v28, v29
        v_add_f32 v30, v30, v31
        v_add_f32 v32, v32, v33
        v_add_f32 v34, v34, v35
        v_add_f32 v28, v28, v30
        v_add_f32 v32, v32, v34
        v_add_f32 v20, v28, v32
        """)
        self.wave_allreduce(20, 24)
        I("v_mul_f32 v20, 0x3a800000, v20")
        for e in range(16):
            I(f"v_sub_f32 v{f+e}, v{f+e}, v20")
        I(f"v_mul_f32 v22, v{f}, v{f}")
        I(f"v_mul_f32 v28, v{f+1}, v{f+1}")
        for e in range(2, 16, 2):
            I(f"v_fmac_f32 v22, v{f+e}, v{f+e}")
            I(f"v_fmac_f32 v28, v{f+e+1}, v{f+e+1}")
        I("v_add_f32 v22, v22, v28")
        self.wave_allreduce(22, 24)
        xb = 116
        I(f"""
        v_mul_f32 v22, 0x3a800000, v22
        v_cvt_pk_bf16_f32 v28, v20, v22
        v_lshlrev_b32 v20, 16, v28
        v_and_b32 v22, 0xffff0000, v28
        v_add_f32 v22, 0x3727c5ac, v22
        v_cvt_pk_bf16_f32 v22, v22, v22
        v_and_b32 v22, 0xffff0000, v22
        v_sqrt_f32 v22, v22
        """)
        for e in range(4):
            I(f"""
            v_lshlrev_b32 v{f+2*e}, 16, v{xb+e}
            v_and_b32 v{f+2*e+1}, 0xffff0000, v{xb+e}
            """)
        I("""
        v_cvt_pk_bf16_f32 v22, v22, v22
        v_and_b32 v22, 0xffff0000, v22
        v_rcp_f32 v22, v22
        """)
        for e in range(8):
            I(f"v_sub_f32 v{f+e}, v{f+e}, v20")
        for e in range(4):
            I(f"v_cvt_pk_bf16_f32 v{28+e}, v{f+2*e}, v{f+2*e+1}")
        for e in range(4):
            I(f"""
            v_lshlrev_b32 v{f+2*e}, 16, v{28+e}
            v_and_b32 v{f+2*e+1}, 0xffff0000, v{28+e}
            """)
        for e in range(8):
            I(f"v_mul_f32 v{f+e}, v{f+e}, v22")
        for e in range(4):
            I(f"v_cvt_pk_bf16_f32 v{f+8+e}, v{f+2*e}, v{f+2*e+1}")
        I(f"ds_write_b128 v36, v[{f+8}:{f+11}]")
        I(f"""
        v_mov_b32 v20, 0
        v_mov_b32 v21, 0
        v_mov_b32 v22, 0
        v_mov_b32 v23, 0
        v_mov_b32 v33, s6
        v_mov_b32 v35, s6
        s_cmp_ge_u32 s3, {Ws}
        s_cbranch_scc1 L_wt_t
        s_waitcnt vmcnt({R*NB}) lgkmcnt(0)
        s_branch L_wt_done
        L_wt_t:
        s_waitcnt vmcnt(0) lgkmcnt(0)
        L_wt_done:
        """)
        self.stamp(2)
        self.lds_inc(0)
        self.lds_spin(0, 8, 24, sleep=0)
        for s in range(4):
            I(f"ds_read_b128 v[{108+4*s}:{111+4*s}], v37 offset:{64*s}")
        for s in range(4):
            for u in range(2):
                b = 124 + 4 * s + 2 * u
                I(f"ds_read_b64_tr_b16 v[{b}:{b+1}], v164 offset:{T_WQ + s*8192 + u*1024}")
        I("v_cmp_lt_u32 vcc, 31, v1")
        for s in range(4):
            I(f"s_waitcnt lgkmcnt({6 - 2*s})")
            I(f"v_mfma_f32_16x16x32_bf16 v[20:23], v[{108+4*s}:{111+4*s}], v[{124+4*s}:{127+4*s}], v[20:23]")
        I("""
        s_nop 7
        s_nop 0
        """)
        self.x1q_store(20, 39)
        self.lds_inc(4)
        self.stamp(3)
        I(f"""
        s_cmp_ge_u32 s3, {Ws}
        s_cbranch_scc1 L_tcrew
        """)
        SC = T_WQ
        if self.ctl:
            I(f"""
            s_lshl_b32 s7, s3, 2
            s_add_u32 s7, s7, {FL + 16}
            v_mov_b32 v160, s7
            v_mov_b32 v161, 0
            v_mov_b32 v162, 0
            s_mov_b32 s74, 0
            """)
        I(f"""
        s_mul_i32 s7, s3, 2064
        s_add_u32 s7, s7, {SC}
        v_mul_u32_u24 v26, 516, v2
        v_add_u32 v26, s7, v26
        v_mov_b32 v27, v26
        """)
        if self.pre:
            self.lds_spin(52, 1, 24, sleep=1)
            for p in range(R):
                ldslot(SLOT[p], 8, 42)
                I(f"v_add_u32 v42, {STEP}, v42")
        self.lds_spin(8, 1, 24, sleep=0)
        NBLK = 256
        n1 = NBLK - (R if self.pre else 0)
        I(f"""
        ds_read_b128 v[4:7], v38
        s_mov_b32 s70, {n1}
        s_waitcnt lgkmcnt(0)
        """)
        self.stamp(4)
        if self.trace:
            I("s_mov_b32 s75, 0")
            I("v_mov_b32 v156, 0")

        def ringwait(tag, waitn):
            if self.ctl:
                I(f"""
                s_cmp_eq_u32 s74, 0
                s_cbranch_scc1 {tag}
                s_waitcnt vmcnt({max(waitn-self.KD, 0)})
                {tag}:
                """)
            I(f"s_waitcnt vmcnt({waitn})")

        def progress():
            if self.ctl:
                I("""
                v_add_u32 v161, 1, v161
                ds_write_b32 v160, v161
                """)

        def modefetch():
            if self.trace:
                I("""
                s_memrealtime s[76:77]
                s_waitcnt lgkmcnt(0)
                s_mov_b32 m0, s75
                s_add_u32 s75, s75, 1
                v_writelane_b32 v156, s76, m0
                """)
            if self.ctl:
                I("""
                s_waitcnt lgkmcnt(0)
                v_readfirstlane_b32 s74, v162
                ds_read_b32 v162, v40 offset:48
                """)

        def kblock(tag, Kb, wait, refill, scoff):
            if wait: ringwait(f"L_wk{tag}", R - 1)
            for dd in range(4):
                c = '0' if dd == 0 else "v20"
                I(f"v_dot2_f32_bf16 v20, v{Kb+dd}, v{4+dd}, {c}")
            if refill:
                I(f"""
                s_cmp_lg_u32 s70, {R}
                s_cbranch_scc1 L_nsw{tag}
                s_mov_b32 s8, s12
                s_mov_b32 s9, s13
                v_mov_b32 v42, v158
                L_nsw{tag}:
                """)
                ldslot(Kb, 8, 42)
                I(f"v_add_u32 v42, {STEP}, v42")
            else:
                I("s_nop 2")
            for n_, ror in enumerate((8, 4, 2, 1)):
                I(f"v_add_f32_dpp v20, v20, v20 row_ror:{ror} row_mask:0xf bank_mask:0xf")
                if n_ < 3:
                    I("s_nop 1")
            I(f"""
            v_cvt_pk_bf16_f32 v24, v20, v20
            v_lshlrev_b32 v20, 16, v24
            v_mul_f32 v20, 0x3db504f3, v20
            v_cvt_pk_bf16_f32 v24, v20, v20
            ds_write_b16 v26, v24 offset:{scoff}
            v_lshlrev_b32 v20, 16, v24
            v_max_f32 v16, v16, v20
            """)
            progress()

        if self.pre:
            I(f"s_waitcnt vmcnt({R})")
            for t in range(R):
                kblock(f"p{t}", EXTRA[t], False, False, 2 * t)
            I(f"v_add_u32 v26, {2 * R}, v26")
        A("L_loop1:")
        modefetch()
        for t in range(R):
            kblock(f"{t}", SLOT[t], True, True, 2 * t)
            I("s_sub_u32 s70, s70, 1")
            if t < R - 1:
                if n1 % R:
                    I("s_cmp_eq_u32 s70, 0")
                    I("s_cbranch_scc1 L_pass2")
            else:
                I(f"v_add_u32 v26, {2 * R}, v26")
                I("s_cmp_lg_u32 s70, 0")
                I("s_cbranch_scc1 L_loop1")
        A("L_pass2:")
        self.row_allreduce(16, 25, 'v_max_f32')
        I(f"""
        s_waitcnt lgkmcnt(0)
        ds_read_u16 v25, v27
        v_mul_f32 v17, s72, v16
        s_mov_b32 s70, {NBLK}
        """)
        s0 = n1 % R
        A("L_loop2:")
        modefetch()
        for t in range(R):
            Vb = SLOT[(s0 + t) % R]
            I(f"""
            s_waitcnt lgkmcnt({1 if (self.ctl and t == 0) else 0})
            v_lshlrev_b32 v20, 16, v25
            ds_read_u16 v25, v27 offset:{2 * (t + 1)}
            v_fma_f32 v20, v20, s72, -v17
            v_exp_f32 v20, v20
            s_nop 0
            v_cvt_pk_bf16_f32 v24, v20, v20
            v_add_f32 v18, v18, v20
            v_and_b32 v28, v24, v8
            v_and_b32 v29, v24, v9
            v_and_b32 v30, v24, v10
            v_and_b32 v31, v24, v11
            """)
            progress()
            ringwait(f"L_wv{t}", R - 1)
            I("s_nop 0")
            I(f"v_mfma_f32_16x16x32_bf16 v[12:15], v[28:31], v[{Vb}:{Vb+3}], v[12:15]")
            ldslot(Vb, 8, 42, self.vflags)
            I(f"v_add_u32 v42, {STEP}, v42")
            I("s_sub_u32 s70, s70, 1")
            if t < R - 1:
                if NBLK % R:
                    I("s_cmp_eq_u32 s70, 0")
                    I("s_cbranch_scc1 L_stail")
            else:
                I(f"v_add_u32 v27, {2 * R}, v27")
                I("s_cmp_lg_u32 s70, 0")
                I("s_cbranch_scc1 L_loop2")
        rare = []
        A("L_stail:")
        if self.trace:
            I(f"""
            s_lshl_b32 s64, s2, 2
            s_add_u32 s64, s64, s3
            s_lshl_b32 s64, s64, 9
            s_add_u32 s64, s64, {WS_TS + 0x80000}
            v_lshlrev_b32 v157, 2, v1
            v_add_u32 v157, s64, v157
            buffer_store_dword v156, v157, s[16:19], 0 offen
            """)
        self.stamp(5)
        self.row_allreduce(18, 25)
        I("""
        v_mov_b32 v16, v17
        v_mov_b32 v17, v18
        ds_write_b64 v165, v[16:17]
        s_mov_b32 exec_hi, 0
        ds_write_b128 v163, v[12:15]
        s_mov_b64 exec, -1
        s_waitcnt lgkmcnt(0)
        s_barrier
        s_branch L_end
        """)
        for t in rare:
            A(f"L_rare_{t}:")
            if self.NB == 1:
                I("v_mov_b32 v24, v20")
            self.row_allreduce(24, 25, 'v_max_f32')
            I(f"""
            v_max_f32 v16, v16, v24
            v_mul_f32 v25, s72, v16
            v_sub_f32 v26, v17, v25
            v_exp_f32 v26, v26
            v_mov_b32 v17, v25
            v_mul_f32 v12, v12, v26
            v_mul_f32 v13, v13, v26
            v_mul_f32 v14, v14, v26
            v_mul_f32 v15, v15, v26
            v_mul_f32 v18, v18, v26
            s_branch L_resume_{t}
            """)
        A("L_tcrew:")
        I("""
        s_sub_u32 s69, s3, 4
        s_lshl_b32 s7, s69, 2
        """)
        self.tr_base(20, 's7', 28)
        I("s_add_u32 s7, s7, 2")
        self.tr_base(21, 's7', 28)
        self.x1_addr(56, WS_X1H, None)
        I("""
        s_lshl_b32 s7, s69, 7
        v_add_u32 v56, s7, v56
        v_mov_b32 v33, 0xffffff00
        """)
        for t in range(8):
            I(f"v_mov_b32 v{44+t}, 0")
        self.lds_spin(56, 1, 28, sleep=2)
        for k, base in ((0, 20), (1, 21)):
            for s in range(4):
                for u in range(2):
                    b = 124 + 16 * k + 4 * s + 2 * u
                    I(f"ds_read_b64_tr_b16 v[{b}:{b+1}], v{base} offset:{T_W1 + s*8192 + u*1024}")
        I("""
        v_cmp_lt_u32 vcc, 31, v1
        s_waitcnt lgkmcnt(0)
        """)
        for s in range(4):
            I(f"v_mfma_f32_16x16x32_bf16 v[44:47], v[{108+4*s}:{111+4*s}], v[{124+4*s}:{127+4*s}], v[44:47]")
            I(f"v_mfma_f32_16x16x32_bf16 v[48:51], v[{108+4*s}:{111+4*s}], v[{140+4*s}:{143+4*s}], v[48:51]")
        I("""
        s_nop 7
        s_nop 0
        v_cndmask_b32 v44, v44, v48, vcc
        v_cndmask_b32 v45, v45, v49, vcc
        v_cndmask_b32 v46, v46, v50, vcc
        v_cndmask_b32 v47, v47, v51, vcc
        s_nop 0
        """)
        self.quad_transpose_tag(44, 52)
        I(f"buffer_store_dwordx4 v[44:47], v56, s[16:19], 0 offen {self.stH}")
        self.lds_inc(12)
        I(f"""
        v_add_u32 v20, 0x10000, v20
        v_add_u32 v21, 0x10000, v21
        s_lshl_b32 s64, s5, 12
        v_and_b32 v24, 31, v1
        v_lshlrev_b32 v24, 4, v24
        v_lshrrev_b32 v23, 5, v1
        v_lshlrev_b32 v23, 9, v23
        v_add_u32 v23, v23, v24
        s_lshl_b32 s65, s69, 10
        s_add_u32 s65, s65, s64
        s_add_u32 s65, s65, {WS_X2H}
        v_add_u32 v23, s65, v23
        v_subrev_u32 v22, {WS_X2H - WS_X2O}, v23
        v_lshrrev_b32 v25, 5, v1
        s_lshl_b32 s7, s69, 1
        v_add_u32 v25, s7, v25
        v_mul_u32_u24 v25, {A2_RS}, v25
        v_and_b32 v28, 31, v1
        v_lshlrev_b32 v28, 3, v28
        v_add_u32 v25, v25, v28
        v_add_u32 v25, {A2}, v25
        v_and_b32 v26, 7, v3
        v_mul_u32_u24 v26, {A2_RS}, v26
        v_lshlrev_b32 v28, 4, v2
        v_add_u32 v26, v26, v28
        v_add_u32 v26, {A2}, v26
        v_lshrrev_b32 v27, 1, v2
        v_lshlrev_b32 v27, 14, v27
        v_and_b32 v28, 1, v2
        v_lshlrev_b32 v28, 13, v28
        v_add_u32 v27, v27, v28
        v_lshrrev_b32 v28, 3, v3
        v_lshlrev_b32 v28, 12, v28
        v_add_u32 v27, v27, v28
        v_and_b32 v28, 7, v3
        v_lshlrev_b32 v28, 4, v28
        v_add_u32 v27, v27, v28
        s_lshl_b32 s64, s4, 17
        s_lshl_b32 s65, s69, 15
        s_add_u32 s64, s64, s65
        s_lshl_b32 s65, s5, 7
        s_add_u32 s64, s64, s65
        s_add_u32 s64, s64, {WS_X3}
        v_add_u32 v27, s64, v27
        v_add_u32 v37, {OBUF}, v24
        s_lshl_b32 s64, s5, 3
        s_add_u32 s64, s64, s4
        s_lshl_b32 s64, s64, 9
        s_add_u32 s64, s64, {WS_X2O}
        v_add_u32 v38, s64, v24
        s_lshl_b32 s64, s73, 12
        s_add_u32 s64, s64, {WS_X3}
        v_lshlrev_b32 v39, 4, v1
        v_add_u32 v39, s64, v39
        s_lshr_b32 s64, s73, 2
        s_lshl_b32 s64, s64, 5
        s_and_b32 s65, s73, 1
        s_lshl_b32 s65, s65, 4
        s_add_u32 s64, s64, s65
        s_and_b32 s65, s73, 2
        s_lshl_b32 s65, s65, 12
        s_add_u32 s64, s64, s65
        v_and_b32 v43, 7, v1
        v_lshlrev_b32 v43, 1, v43
        v_add_u32 v43, s64, v43
        v_add_u32 v42, 0x1000, v43
        buffer_load_ushort v156, v43, s[24:27], 0 offen
        buffer_load_ushort v157, v43, s[24:27], 0 offen offset:2048
        buffer_load_ushort v158, v42, s[24:27], 0 offen
        buffer_load_ushort v159, v42, s[24:27], 0 offen offset:2048
        s_mov_b32 s28, s48
        s_and_b32 s29, s49, 0xffff
        s_mov_b32 s30, 16384
        s_mov_b32 s31, 0x20000
        v_mov_b32 v12, 0
        v_mov_b32 v13, 0
        v_mov_b32 v14, 0
        v_mov_b32 v15, 0
        v_mov_b32 v16, 0
        v_mov_b32 v17, 0
        v_mov_b32 v18, 0
        v_mov_b32 v19, 0
        """)
        self.lds_spin(32, 1, 28, sleep=8)
        for k, base in ((0, 20), (1, 21)):
            for s in range(4):
                for u in range(2):
                    b = 44 + 16 * k + 4 * s + 2 * u
                    I(f"ds_read_b64_tr_b16 v[{b}:{b+1}], v{base} offset:{T_WO - 65536 + s*8192 + u*1024}")
        I("s_waitcnt lgkmcnt(0)")
        for k, base in ((0, 20), (1, 21)):
            for s in range(4):
                for u in range(2):
                    b = 76 + 16 * k + 4 * s + 2 * u
                    I(f"ds_read_b64_tr_b16 v[{b}:{b+1}], v{base} offset:{T_W2 - 65536 + s*8192 + u*1024}")
        self.lds_spin(16, 2 * self.tat, 28, sleep=64, ge=True)
        I(f"""
        s_mov_b32 s71, 0
        L_th:
        buffer_load_dwordx4 v[108:111], v23, s[16:19], 0 offen {self.thflags}
        s_waitcnt vmcnt(0)
        v_xor_b32 v28, s6, v109
        v_xor_b32 v29, s6, v111
        v_or_b32 v28, v28, v29
        v_cmp_ne_u32 vcc, 0, v28
        s_add_u32 s71, s71, 1
        s_cbranch_vccz L_th_done
        s_sleep 32
        s_cmp_lt_u32 s71, {SPIN_MAX}
        s_cbranch_scc1 L_th
        L_th_done:
        ds_write2_b32 v25, v108, v110 offset0:0 offset1:1
        s_waitcnt lgkmcnt(0)
        """)
        self.lds_inc(40)
        self.lds_spin(40, 4, 28, sleep=2)
        for s in range(4):
            I(f"ds_read_b128 v[{108+4*s}:{111+4*s}], v26 offset:{64*s}")
        I("s_waitcnt lgkmcnt(0)")
        for s in range(4):
            I(f"v_mfma_f32_16x16x32_bf16 v[12:15], v[{108+4*s}:{111+4*s}], v[{76+4*s}:{79+4*s}], v[12:15]")
            I(f"v_mfma_f32_16x16x32_bf16 v[16:19], v[{108+4*s}:{111+4*s}], v[{92+4*s}:{95+4*s}], v[16:19]")
        I(f"""
        v_mov_b32 v141, s6
        v_mov_b32 v143, s6
        v_mov_b32 v33, 0xffffff00
        v_mov_b32 v36, {MLB}
        v_cmp_lt_u32 s[82:83], 31, v1
        s_barrier
        """)
        self.stamp(6)
        I("""
        s_cmp_lg_u32 s3, 4
        s_cbranch_scc1 L_x2
        """)
        I("""
        ds_read_b128 v[108:111], v36
        ds_read_b128 v[112:115], v36 offset:16
        """)
        for w in range(4):
            I(f"ds_read_b128 v[{116+4*w}:{119+4*w}], v37 offset:{512*w}")
        I("""
        s_waitcnt lgkmcnt(4)
        v_max3_f32 v28, v108, v110, v112
        v_max_f32 v28, v28, v114
        v_sub_f32 v108, v108, v28
        v_sub_f32 v110, v110, v28
        v_sub_f32 v112, v112, v28
        v_sub_f32 v114, v114, v28
        v_exp_f32 v108, v108
        v_exp_f32 v110, v110
        v_exp_f32 v112, v112
        v_exp_f32 v114, v114
        v_mul_f32 v29, v108, v109
        v_fmac_f32 v29, v110, v111
        v_fmac_f32 v29, v112, v113
        v_fmac_f32 v29, v114, v115
        v_rcp_f32 v29, v29
        s_waitcnt lgkmcnt(0)
        """)
        for e in range(4):
            I(f"v_mul_f32 v{132+e}, v108, v{116+e}")
        for w in range(1, 4):
            for e in range(4):
                I(f"v_fmac_f32 v{132+e}, v{108+2*w}, v{116+4*w+e}")
        I(f"""
        v_mul_f32 v132, v132, v29
        v_mul_f32 v133, v133, v29
        v_mul_f32 v134, v134, v29
        v_mul_f32 v135, v135, v29
        v_cvt_pk_bf16_f32 v140, v132, v133
        v_cvt_pk_bf16_f32 v142, v134, v135
        s_mov_b32 exec_hi, 0
        buffer_store_dwordx4 v[140:143], v38, s[16:19], 0 offen {self.stO}
        s_mov_b64 exec, -1
        """)
        self.stamp(7)
        A("L_x2:")
        I("s_mov_b32 s71, 0")
        A("L_x2loop:")
        I(f"""
        buffer_load_dwordx4 v[108:111], v22, s[16:19], 0 offen {self.ldO}
        s_waitcnt vmcnt(0)
        v_xor_b32 v28, s6, v109
        v_xor_b32 v29, s6, v111
        v_or_b32 v28, v28, v29
        v_cmp_ne_u32 vcc, 0, v28
        s_add_u32 s71, s71, 1
        s_cbranch_vccz L_x2done
        s_mov_b64 exec, vcc
        """)
        if self.x2sleep:
            I(f"s_sleep {self.x2sleep}")
        I(f"""
        s_cmp_lt_u32 s71, {SPIN_MAX}
        s_cbranch_scc1 L_x2loop
        L_x2done:
        s_mov_b64 exec, 1
        ds_write2_b32 v25, v108, v110 offset0:0 offset1:1
        """)
        self.L.pop(); self.L.pop()
        I("""
        s_mov_b64 exec, -1
        ds_write2_b32 v25, v108, v110 offset0:0 offset1:1
        s_mov_b64 exec, 1
        ds_add_u32 v40, v41 offset:44
        s_mov_b64 exec, -1
        """)
        self.lds_spin(44, 4, 28, sleep=0)
        self.stamp(8)
        for s in range(4):
            I(f"ds_read_b128 v[{108+4*s}:{111+4*s}], v26 offset:{64*s}")
        for s in range(4):
            I(f"s_waitcnt lgkmcnt({3-s})")
            I(f"v_mfma_f32_16x16x32_bf16 v[12:15], v[{108+4*s}:{111+4*s}], v[{44+4*s}:{47+4*s}], v[12:15]")
            I(f"v_mfma_f32_16x16x32_bf16 v[16:19], v[{108+4*s}:{111+4*s}], v[{60+4*s}:{63+4*s}], v[16:19]")
        I(f"""
        s_nop 7
        v_cndmask_b32 v144, v12, v16, s[82:83]
        v_cndmask_b32 v145, v13, v17, s[82:83]
        v_cndmask_b32 v146, v14, v18, s[82:83]
        v_cndmask_b32 v147, v15, v19, s[82:83]
        v_add_u32 v144, 0x80, v144
        v_add_u32 v145, 0x80, v145
        v_add_u32 v146, 0x80, v146
        v_add_u32 v147, 0x80, v147
        v_and_or_b32 v144, v144, v33, s79
        v_and_or_b32 v145, v145, v33, s79
        v_and_or_b32 v146, v146, v33, s79
        v_and_or_b32 v147, v147, v33, s79
        buffer_store_dwordx4 v[144:147], v27, s[16:19], 0 offen {self.st3}
        """)
        self.stamp(9)
        I("""
        s_cmp_lg_u32 s3, 4
        s_cbranch_scc1 L_end
        """)
        self.poll4("L_x3", 39, 44, sleep=self.x3sleep, flags=self.ld3)
        I("s_nop 0")
        for e in range(4):
            I(f"v_add_f32_dpp v{44+e}, v{44+e}, v{44+e} row_ror:8 row_mask:0xf bank_mask:0xf")
        for sw in ('v_permlane16_swap_b32', 'v_permlane32_swap_b32'):
            for e in range(4):
                I(f"v_mov_b32 v{48+e}, v{44+e}")
            for e in range(4):
                I(f"{sw} v{44+e}, v{48+e}")
            for e in range(4):
                I(f"v_add_f32 v{44+e}, v{44+e}, v{48+e}")
        for e in range(4):
            I(f"v_lshlrev_b32 v{156+e}, 16, v{156+e}")
        for e in range(4):
            I(f"v_add_f32 v{44+e}, v{44+e}, v{156+e}")
        I(f"""
        v_cvt_pk_bf16_f32 v44, v44, v45
        v_cvt_pk_bf16_f32 v46, v46, v47
        v_lshrrev_b32 v45, 16, v44
        v_lshrrev_b32 v47, 16, v46
        s_mov_b64 exec, 0xff
        buffer_store_short v44, v43, s[28:31], 0 offen {self.outsc}
        buffer_store_short v45, v43, s[28:31], 0 offen offset:2048 {self.outsc}
        buffer_store_short v46, v42, s[28:31], 0 offen {self.outsc}
        buffer_store_short v47, v42, s[28:31], 0 offen offset:2048 {self.outsc}
        s_mov_b64 exec, -1
        """)
        self.stamp(10)
        I("""
        s_cmp_lg_u32 s2, 0
        s_cbranch_scc1 L_end
        v_mov_b32 v30, s6
        s_mov_b64 exec, 1
        buffer_store_dword v30, off, s[16:19], 0 sc1
        s_branch L_end
        """)
        A("L_poller:")
        I(f"""
        s_lshl_b32 s64, s5, 3
        s_add_u32 s68, s64, s4
        s_lshl_b32 s65, s68, 13
        s_add_u32 s65, s65, {WS_X1Q}
        v_lshlrev_b32 v20, 4, v1
        v_add_u32 v20, s65, v20
        v_add_u32 v21, 0x1000, v20
        v_lshlrev_b32 v22, 2, v1
        v_add_u32 v22, {QV}, v22
        s_getreg_b32 s52, hwreg(HW_REG_XCC_ID, 0, 4)
        s_lshl_b32 s52, s52, 10
        s_add_u32 s52, s52, {WS_PRG}
        v_lshlrev_b32 v80, 4, v1
        v_add_u32 v80, s52, v80
        s_lshl_b32 s54, s2, 2
        s_add_u32 s54, s54, s52
        v_mov_b32 v81, s54
        s_barrier
        """)
        if self.pwarm & 4:
            I(f"""
            v_lshlrev_b32 v26, 7, v1
            v_add_u32 v26, s65, v26
            buffer_load_dword v25, v26, s[16:19], 0 offen sc1
            """)
        if self.pwarm & 2:
            I(f"""
            s_lshl_b32 s64, s73, 12
            s_add_u32 s64, s64, {WS_X3}
            v_and_b32 v27, 31, v1
            v_lshlrev_b32 v27, 7, v27
            v_add_u32 v27, s64, v27
            s_mov_b32 exec_hi, 0
            buffer_load_dword v27, v27, s[16:19], 0 offen sc1
            s_mov_b64 exec, -1
            """)
        if self.pwarm & 1:
            I(f"""
            buffer_load_dwordx4 v[52:55], v80, s[16:19], 0 offen sc1
            s_lshl_b32 s64, s68, 9
            s_add_u32 s64, s64, {WS_X2O}
            v_and_b32 v24, 3, v1
            v_lshlrev_b32 v24, 7, v24
            v_add_u32 v24, s64, v24
            s_mov_b64 exec, 15
            buffer_load_dword v26, v24, s[16:19], 0 offen sc1
            s_mov_b64 exec, -1
            """)
        I(f"""
        s_waitcnt vmcnt(0)
        v_readfirstlane_b32 s6, v5
        s_nop 3
        s_add_u32 s6, s6, 1
        s_and_b32 s79, s6, 0xff
        s_lshl_b32 s55, s6, 8
        """)
        self.lds_spin(4, 8, 24, sleep=1)
        self.stamp(2)
        if self.light:
            I(f"""
            v_lshlrev_b32 v23, 10, v1
            v_add_u32 v23, s65, v23
            s_mov_b32 s71, 0
            s_mov_b64 exec, 0xff
            L_lq:
            buffer_load_dwordx2 v[44:45], v23, s[16:19], 0 offen offset:896 {self.ldQ}
            s_waitcnt vmcnt(0)
            v_cmp_ne_u32 vcc, s6, v45
            s_add_u32 s71, s71, 1
            s_cbranch_vccz L_lq_done
            s_cmp_lt_u32 s71, {SPIN_MAX}
            s_cbranch_scc1 L_lq
            L_lq_done:
            s_mov_b64 exec, -1
            """)
        I(f"""
        s_lshl_b32 s65, s68, 12
        s_add_u32 s65, s65, {WS_X1H}
        v_lshlrev_b32 v62, 4, v1
        v_add_u32 v62, s65, v62
        v_and_b32 v63, 31, v1
        v_lshlrev_b32 v63, 4, v63
        s_mov_b32 s71, 0
        L_pq_loop:
        """)
        for i in range(8):
            I(f"buffer_load_dwordx4 v[{84+4*i}:{87+4*i}], v{20 if i < 4 else 21}, s[16:19], 0 offen offset:{(i & 3)*1024} {self.ldQ}")
        if self.hearly:
            for i in range(4):
                I(f"buffer_load_dwordx4 v[{44+4*i}:{47+4*i}], v62, s[16:19], 0 offen offset:{i*1024} {self.hflags}")
        I("s_waitcnt vmcnt(0)")
        self.tagcheck(84, 8, 30, 31, 32)
        I(f"""
        v_cmp_ne_u32 vcc, 0, v30
        s_add_u32 s71, s71, 1
        s_cbranch_vccz L_pq_done
        s_cmp_lt_u32 s71, {SPIN_MAX}
        s_cbranch_scc1 L_pq_loop
        L_pq_done:
        """)
        for i in range(1, 8):
            I(f"v_add_f32 v84, v84, v{84+4*i}")
            I(f"v_add_f32 v86, v86, v{86+4*i}")
        I("""
        v_cvt_pk_bf16_f32 v84, v84, v86
        ds_write_b32 v22, v84
        s_mov_b64 exec, 1
        ds_write_b32 v40, v41 offset:8
        s_mov_b64 exec, -1
        s_waitcnt lgkmcnt(0)
        """)
        self.stamp(3)
        I("""
        s_mov_b32 s75, 0
        s_mov_b32 s70, 0
        v_mov_b32 v26, 0
        """)
        if self.hearly:
            self.tagcheck4(44, 4, 30, 31, 32)
            I("""
            v_cmp_ne_u32 vcc, 0, v30
            s_cbranch_vccz L_hfin
            """)
        I(f"""
        L_mon:
        ds_read_b128 v[44:47], v40 offset:16
        s_waitcnt lgkmcnt(0)
        v_min_u32 v26, v44, v45
        v_min_u32 v27, v46, v47
        v_min_u32 v26, v26, v27
        v_lshrrev_b32 v26, 1, v26
        s_cmp_lg_u32 s75, 0
        s_cbranch_scc1 L_mon_go
        v_cmp_gt_u32 vcc, {self.hat}, v26
        s_cbranch_vccnz L_mon_go
        s_mov_b32 s71, 0
        L_ph_loop:
        """)
        for i in range(4):
            if 'nold' not in self.hdbg:
                I(f"buffer_load_dwordx4 v[{44+4*i}:{47+4*i}], v62, s[16:19], 0 offen offset:{i*1024} {self.hflags}")
        I("s_waitcnt vmcnt(0)")
        self.tagcheck4(44, 4, 30, 31, 32)
        if 'nold' in self.hdbg:
            I("v_mov_b32 v30, 0")
        I(f"""
        v_cmp_ne_u32 vcc, 0, v30
        s_add_u32 s71, s71, 1
        s_cbranch_vccz L_hfin
        s_sleep {self.sleep_h}
        s_cmp_lt_u32 s71, {SPIN_MAX}
        s_cbranch_scc1 L_ph_loop
        L_hfin:
        s_mov_b32 s75, 1
        """)
        for e in range(16):
            I(f"v_and_b32 v{44+e}, 0xffffff00, v{44+e}")
        for e in range(4):
            I(f"v_add_f32 v{44+e}, v{44+e}, v{48+e}")
            I(f"v_add_f32 v{52+e}, v{52+e}, v{56+e}")
        for e in range(4):
            I(f"v_add_f32 v{44+e}, v{44+e}, v{52+e}")
        I("s_nop 0")
        self.half_reduce4(44, 48)
        I(f"""
        v_max_f32 v44, 0, v44
        v_max_f32 v45, 0, v45
        v_max_f32 v46, 0, v46
        v_max_f32 v47, 0, v47
        v_cvt_pk_bf16_f32 v44, v44, v45
        v_mov_b32 v45, s6
        v_cvt_pk_bf16_f32 v46, v46, v47
        v_mov_b32 v47, s6
        s_lshl_b32 s65, s68, 9
        s_add_u32 s65, s65, {WS_X2H}
        v_add_u32 v22, s65, v63
        s_mov_b32 exec_hi, 0
        buffer_store_dwordx4 v[44:47], v22, s[16:19], 0 offen {self.stX2H}
        s_mov_b64 exec, -1
        """)
        self.stamp(4)
        GLD = ""
        PRGST = "s_nop 0" if self.noprg else f"buffer_store_dword v30, v81, s[16:19], 0 offen {self.prgst}"
        I(f"""
        L_mon_go:
        v_cmp_le_u32 vcc, {256 - self.MEXIT}, v26
        v_min_u32 v26, 255, v26
        v_or_b32 v30, s55, v26
        s_mov_b64 exec, 1
        {PRGST}
        s_mov_b64 exec, -1
        s_cbranch_vccnz L_mon_exit
        buffer_load_dwordx4 v[52:55], v80, s[16:19], 0 offen sc1
        {GLD}
        s_waitcnt vmcnt(0)
        v_mov_b32 v28, 0
        v_mov_b32 v29, 0
        """)
        for e in range(4):
            I(f"""
            v_xor_b32 v27, s55, v{52+e}
            v_cmp_gt_u32 vcc, 256, v27
            s_nop 1
            v_cndmask_b32 v27, 0, v27, vcc
            v_add_u32 v28, v28, v27
            v_addc_co_u32 v29, vcc, 0, v29, vcc
            """)
        I("v_lshl_add_u32 v28, v29, 16, v28")
        self.wave_allreduce(28, 29, 'v_add_u32')
        I("""
        v_lshrrev_b32 v29, 16, v28
        v_and_b32 v28, 0xffff, v28
        """)
        if self.gctl:
            I(f"""
            v_cvt_f32_u32 v62, v28
            v_cvt_f32_u32 v63, v29
            v_rcp_f32 v63, v63
            s_nop 0
            v_mul_f32 v62, v62, v63
            v_mul_f32 v62, 8.0, v62
            v_cvt_u32_f32 v62, v62
            v_min_u32 v62, 0x7ff, v62
            s_cmp_ge_u32 s2, 8
            s_cbranch_scc1 L_mon_nopub
            v_or_b32 v63, s56, v62
            s_mov_b64 exec, 1
            buffer_store_dword v63, v83, s[16:19], 0 offen {self.gst}
            s_mov_b64 exec, -1
            L_mon_nopub:
            v_lshrrev_b32 v64, 15, v60
            v_cmp_eq_u32 vcc, s57, v64
            v_and_b32 v65, 0x7ff, v60
            v_bfe_u32 v66, v60, 11, 4
            v_cndmask_b32 v65, 0, v65, vcc
            v_cndmask_b32 v67, 0, 1, vcc
            v_cndmask_b32 v66, -1, v66, vcc
            v_cmp_eq_u32 vcc, s58, v66
            v_lshl_add_u32 v67, v67, 16, v65
            s_nop 0
            v_cndmask_b32 v68, 0, v65, vcc
            s_nop 1
            v_add_u32_dpp v67, v67, v67 row_ror:4 row_mask:0xf bank_mask:0xf
            v_max_u32_dpp v68, v68, v68 row_ror:4 row_mask:0xf bank_mask:0xf
            s_nop 0
            v_add_u32_dpp v67, v67, v67 row_ror:2 row_mask:0xf bank_mask:0xf
            v_max_u32_dpp v68, v68, v68 row_ror:2 row_mask:0xf bank_mask:0xf
            s_nop 0
            v_add_u32_dpp v67, v67, v67 row_ror:1 row_mask:0xf bank_mask:0xf
            v_max_u32_dpp v68, v68, v68 row_ror:1 row_mask:0xf bank_mask:0xf
            v_lshrrev_b32 v69, 16, v67
            v_and_b32 v67, 0xffff, v67
            v_cvt_f32_u32 v69, v69
            v_cvt_f32_u32 v67, v67
            v_max_f32 v69, 1.0, v69
            v_rcp_f32 v69, v69
            s_nop 0
            v_mul_f32 v67, v67, v69
            v_cvt_u32_f32 v67, v67
            v_sub_u32 v69, v68, v67
            v_cmp_lt_u32 vcc, 0, v68
            s_nop 1
            v_cndmask_b32 v69, 0, v69, vcc
            v_mul_i32_i24 v69, {self.GG}, v69
            v_lshlrev_b32 v27, 3, v26
            v_sub_u32 v27, v27, v62
            v_add_u32 v27, v27, v69
            v_cmp_lt_i32 vcc, {self.TH * 8}, v27
            s_nop 1
            v_cndmask_b32 v29, 0, 1, vcc
            """)
        else:
            I(f"""
            v_subrev_u32 v27, {self.TH}, v26
            v_max_i32 v27, 0, v27
            v_mul_u32_u24 v27, v27, v29
            v_cmp_gt_u32 vcc, v27, v28
            s_nop 1
            v_cndmask_b32 v29, 0, 1, vcc
            """)
        I(f"""
        ds_write_b32 v40, v29 offset:48
        s_sleep {self.msleep}
        s_add_u32 s70, s70, 1
        s_cmp_lt_u32 s70, {SPIN_MAX}
        s_cbranch_scc1 L_mon
        L_mon_exit:
        v_mov_b32 v29, 0
        ds_write_b32 v40, v29 offset:48
        s_waitcnt lgkmcnt(0)
        s_branch L_end
        """)
        A("L_loader:")
        I(f"""
        s_min_u32 s66, s5, 27
        s_mul_i32 s64, s4, {128*7168}
        s_lshl_b32 s65, s66, 8
        s_add_u32 s64, s64, s65
        s_add_u32 s52, s44, s64
        s_addc_u32 s53, s45, 0
        s_and_b32 s53, s53, 0xffff
        s_cmp_lt_u32 s5, 28
        s_cselect_b32 s54, {127*7168+256}, 0
        s_mov_b32 s55, 0x20000
        s_lshl_b32 s64, s5, 18
        s_lshl_b32 s65, s4, 8
        s_add_u32 s64, s64, s65
        s_add_u32 s56, s40, s64
        s_addc_u32 s57, s41, 0
        s_and_b32 s57, s57, 0xffff
        s_mov_b32 s58, {127*2048+256}
        s_mov_b32 s59, 0x20000
        s_lshl_b32 s64, s66, 18
        s_add_u32 s64, s64, s65
        s_add_u32 s60, s46, s64
        s_addc_u32 s61, s47, 0
        s_and_b32 s61, s61, 0xffff
        s_cmp_lt_u32 s5, 28
        s_cselect_b32 s62, {127*2048+256}, 0
        s_mov_b32 s63, 0x20000
        v_mul_u32_u24 v10, 7168, v2
        v_add_u32 v11, v10, v9
        v_add_u32 v10, v10, v8
        v_lshlrev_b32 v12, 11, v2
        v_add_u32 v13, v12, v9
        v_add_u32 v12, v12, v8
        s_barrier
        """)
        if self.lstart != '0':
            I("s_waitcnt vmcnt(0)")
        if self.lstart == 'A':
            self.lds_spin(0, 8, 24, sleep=1)

        def tile_loop(lab, srd, stride, ldsb, va, vb, throttle):
            I(f"""
            s_mov_b32 s64, 0
            s_mov_b32 s65, {ldsb}
            """)
            A(f"{lab}:")
            for i in range(4):
                I(f"""
                s_mov_b32 m0, s65
                s_add_u32 s65, s65, 1024
                buffer_load_dwordx4 v{va if i < 2 else vb}, s[{srd}:{srd+3}], s64 offen {self.wflags} lds
                s_add_u32 s64, s64, {4*stride}
                s_waitcnt vmcnt({min(throttle, 48) - 1})
                """)
            I(f"""
            s_cmp_lt_u32 s65, {ldsb + 32768}
            s_cbranch_scc1 {lab}
            """)
        tile_loop("L_t_w1", 52, 7168, T_W1, 10, 11, self.T[0])
        tile_loop("L_t_wo", 56, 2048, T_WO, 12, 13, self.T[1])
        I("s_waitcnt vmcnt(32)")
        self.lds_inc(56)
        tile_loop("L_t_w2", 60, 2048, T_W2, 12, 13, self.T[2])
        self.lds_inc(52)
        self.stamp(2)
        I("s_waitcnt vmcnt(0)")
        self.lds_inc(32)
        I("s_waitcnt lgkmcnt(0)")
        self.stamp(6)
        A("L_end:")
        self.stampflush()
        A("L_exit:")
        A("  s_endpgm")
        A('.section .rodata,"a"')
        A(".p2align 6")
        A(f".amdhsa_kernel {KNAME}")
        A("  .amdhsa_next_free_vgpr 168")
        A("  .amdhsa_next_free_sgpr 96")
        A("  .amdhsa_accum_offset 168")
        A("  .amdhsa_group_segment_fixed_size 0")
        A("  .amdhsa_kernarg_size 88")
        A("  .amdhsa_user_sgpr_count 2")
        A("  .amdhsa_user_sgpr_kernarg_segment_ptr 1")
        A("  .amdhsa_system_sgpr_workgroup_id_x 1")
        A("  .amdhsa_float_denorm_mode_32 3")
        A(".end_amdhsa_kernel")
        return '\n'.join(self.L) + '\n'


if __name__ == '__main__':
    for spec in sys.argv[1:]:
        name, _, rest = spec.partition(':')
        kw = {}
        if rest:
            for a in rest.split(','):
                k, v = a.split('=')
                kw[k] = v.replace('+', ' ')
        open(name, 'w').write(Gen(**kw).gen())
```
